```python
import torch

def _softmax(x, axis=-1):
    return torch.softmax(x, dim=axis)

def _gelu(x):
    return torch.nn.functional.gelu(x, approximate='tanh')

def _silu(x):
    return torch.nn.functional.silu(x)

def _sigmoid(x):
    return torch.sigmoid(x)

def _layernorm(x, axis=-1, eps=1e-05):
    m = x.mean(dim=axis, keepdim=True)
    v = x.var(dim=axis, keepdim=True, unbiased=False)
    return (x - m) / torch.sqrt(v + eps)

def _scatter_add(tgt, idx, src, axis=0):
    return tgt.clone().index_add_(axis, idx, src)

def _segment_sum(src, seg, n):
    out = torch.zeros((n,) + src.shape[1:], dtype=src.dtype)
    return out.index_add_(0, seg, src)

def _pad(x, pw):
    flat = tuple((v for pair in reversed(pw) for v in pair))
    return torch.nn.functional.pad(x, flat)
kernel_name = 'standalone__autoregressive_conv_wavernn__speech'

def setup_inputs():

    _w = lambda a: (lambda t: t.to(torch.bfloat16) if t.is_floating_point() else t)(torch.as_tensor(a))
    B, T, D, K = (2, 1000, 256, 15)
    return {'x': _w((lambda *s: torch.randn(*s, dtype=torch.bfloat16) * 0.05)(B, T, D)), 'w': _w((lambda *s: torch.randn(*s, dtype=torch.bfloat16) * 0.05)(K, D, 2 * D))}

def reference(x, w):
    B, T, D = x.shape
    K = w.shape[0]
    dil = 2
    pad = (K - 1) * dil
    xp = _pad(x, ((0, 0), (pad, 0), (0, 0)))
    h = torch.einsum('btd,de->bte', xp[:, 0:T, :], w[0])
    for i in range(1, K):
        h = h + torch.einsum('btd,de->bte', xp[:, i * dil:i * dil + T, :], w[i])
    f, g = (h[..., :D].clone(), h[..., D:].clone())
    return torch.tanh(f) * _sigmoid(g)
```

```python
import sys, argparse

KNAME = "standalone__autoregressive_conv_wavernn__speech_kernel"
HDR = """; Kernarg layout for this problem (40 bytes, ptrs only, base s[0:1]):
"""

class Asm:
    def __init__(self):
        self.L = []
    def __call__(self, s):
        self.L.append(s)
    def text(self):
        return "\n".join(self.L) + "\n"

def kd(name, vgpr, sgpr=96):
    acc = (vgpr + 3) // 4 * 4
    return f""".amdhsa_kernel {name}
  .amdhsa_next_free_vgpr {vgpr}
  .amdhsa_next_free_sgpr {sgpr}
  .amdhsa_accum_offset {acc}
  .amdhsa_group_segment_fixed_size 0
  .amdhsa_kernarg_size 40
  .amdhsa_user_sgpr_count 2
  .amdhsa_user_sgpr_kernarg_segment_ptr 1
  .amdhsa_system_sgpr_workgroup_id_x 1
.end_amdhsa_kernel
"""

XPART = 18432
XCLS = 4608

def gen_main(A, name, o):
    NR = o.NR
    RING0 = 4 * XPART
    NX, NW = 12, 3
    ACC = 0
    VX = 64
    VW = VX + 4 * NX
    VA = VW + 4 * NW
    VB = VA + 10
    VXS = VB + 1
    VWS = VXS + 5
    VO = VWS + 1
    VR = VO + 1
    VT = VR + 2
    VT = (VT + 3) // 4 * 4
    NV = VT + 56
    SX, SW, SO, SD = 8, 12, 16, 20
    sWave, sNt, sRing, sOff, sT = 24, 25, 26, 27, 28
    STAMP = 40
    nstamp = [0]
    def stamp():
        if o.stamps:
            A(f"s_memtime s[{STAMP+2*nstamp[0]}:{STAMP+2*nstamp[0]+1}]")
            nstamp[0] += 1

    A(f".globl {name}")
    A(".p2align 8")
    A(f".type {name},@function")
    A(f"{name}:")
    stamp()
    if o.stamps:
        A("s_memrealtime s[90:91]")
    A("s_load_dwordx4 s[4:7], s[0:1], 0")
    A("s_load_dwordx2 s[16:17], s[0:1], 16")
    if o.relaid or o.stamps:
        A("s_load_dwordx2 s[20:21], s[0:1], 32")
    A("s_cmp_ge_u32 s2, 256")
    A("s_cbranch_scc1 L_end_" + name)
    t0, t1, t2, t3, lane = VT, VT + 1, VT + 2, VT + 3, VT + 4
    if o.codepf:
        A("s_getpc_b64 s[30:31]")
        A(f"v_lshlrev_b32 v{t0}, 6, v0")
        A(f"v_and_b32 v{t0}, 0x1fc0, v{t0}")
        A(f"v_mov_b32 v{t1}, s31")
        A(f"v_add_co_u32 v{t0}, vcc, s30, v{t0}")
        A("s_nop 1")
        A(f"v_addc_co_u32 v{t1}, vcc, 0, v{t1}, vcc")
        A(f"global_load_dword v{VT+8}, v[{t0}:{t1}], off")
    A(f"v_lshrrev_b32 v{t0}, 6, v0")
    A(f"v_and_b32 v{lane}, 63, v0")
    A(f"v_readfirstlane_b32 s{sWave}, v{t0}")
    A("s_and_b32 s3, s2, 3")
    A("s_lshl_b32 s3, s3, 2")
    A("s_bfe_u32 s29, s2, 0x20003")
    A(f"s_add_u32 s{sNt}, s3, s29")
    A("s_bfe_u32 s30, s2, 0x10002")
    A("s_mul_i32 s30, s30, 512000")
    A("s_bfe_u32 s31, s2, 0x10005")
    A("s_lshr_b32 s32, s2, 6")
    A("s_lshl_b32 s33, s32, 17")
    A("s_lshl_b32 s34, s31, 9")
    A("s_add_u32 s33, s33, s34")
    A("s_sub_u32 s34, s33, 14336")
    A(f"v_lshrrev_b32 v{t0}, 3, v{lane}")
    A(f"v_lshrrev_b32 v{t1}, 4, v{lane}")
    A(f"v_xor_b32 v{t1}, v{t1}, v{lane}")
    A(f"v_and_b32 v{t1}, 7, v{t1}")
    A(f"v_lshlrev_b32 v{t1}, 4, v{t1}")
    A(f"v_lshl_add_u32 v{t0}, v{t0}, 12, v{t1}")
    A(f"s_lshl_b32 s35, s{sWave}, 10")
    A("s_add_u32 s35, s35, s34")
    A(f"v_add_u32 v{VXS}, s35, v{t0}")
    A(f"v_xor_b32 v{t0}, 64, v{t0}")
    A("s_add_u32 s35, s35, 32768")
    A(f"v_add_u32 v{VXS+1}, s35, v{t0}")
    A(f"v_add_u32 v{VXS+2}, 0x10000, v{VXS}")
    A(f"v_add_u32 v{VXS+3}, 0x10000, v{VXS+1}")
    A(f"v_add_u32 v{VXS+4}, 0x20000, v{VXS}")
    if o.relaid:
        A(f"s_mul_i32 s35, s{sNt}, 245760")
        A(f"s_mul_i32 s36, s{sWave}, 15360")
        A("s_add_u32 s35, s35, s36")
        A(f"v_lshlrev_b32 v{VWS}, 4, v{lane}")
        A(f"v_add_u32 v{VWS}, s35, v{VWS}")
    else:
        A(f"v_lshrrev_b32 v{t0}, 2, v{lane}")
        A(f"v_lshlrev_b32 v{t0}, 10, v{t0}")
        A(f"v_and_b32 v{t1}, 2, v{lane}")
        A(f"v_lshlrev_b32 v{t1}, 8, v{t1}")
        A(f"v_and_b32 v{t2}, 1, v{lane}")
        A(f"v_lshlrev_b32 v{t2}, 4, v{t2}")
        A(f"v_add3_u32 v{t0}, v{t0}, v{t1}, v{t2}")
        A(f"s_lshl_b32 s35, s{sWave}, 14")
        A(f"s_lshl_b32 s36, s{sNt}, 5")
        A("s_add_u32 s35, s35, s36")
        A(f"v_add_u32 v{VWS}, s35, v{t0}")
    A(f"s_mul_i32 s{sRing}, s{sWave}, {NR*1024}")
    A(f"s_add_u32 s{sRing}, s{sRing}, {RING0}")
    A(f"s_mul_i32 s37, s{sWave}, {XCLS}")
    A("s_waitcnt lgkmcnt(0)")
    stamp()
    A(f"s_add_u32 s{SX}, s4, s30")
    A(f"s_addc_u32 s{SX+1}, s5, 0")
    A(f"s_and_b32 s{SX+1}, s{SX+1}, 0xffff")
    A(f"s_mov_b32 s{SX+2}, 512000")
    A(f"s_mov_b32 s{SX+3}, 0x20000")
    if o.relaid:
        A(f"s_mov_b32 s{SW}, s20")
        A(f"s_and_b32 s{SW+1}, s21, 0xffff")
    else:
        A(f"s_mov_b32 s{SW}, s6")
        A(f"s_and_b32 s{SW+1}, s7, 0xffff")
    A(f"s_mov_b32 s{SW+2}, 3932160")
    A(f"s_mov_b32 s{SW+3}, 0x20000")

    vmq = []
    if o.codepf:
        vmq.append("code")
    def vm_wait(label):
        idx = max(i for i, l in enumerate(vmq) if l == label)
        n = len(vmq) - 1 - idx
        assert n <= 63
        return n
    def dma_x(q, k):
        A(f"s_add_u32 m0, s37, {q*XPART + k*1024}")
        if k == 4:
            A("s_mov_b32 exec_hi, 0")
        else:
            A("s_nop 0")
        if q == 0:
            A(f"buffer_load_dwordx4 v{VXS+k}, s[{SX}:{SX+3}], 0 offen lds")
        else:
            A(f"s_movk_i32 s{sT}, {q*128}")
            A(f"buffer_load_dwordx4 v{VXS+k}, s[{SX}:{SX+3}], s{sT} offen lds")
        if k == 4:
            A("s_mov_b32 exec_hi, -1")
        vmq.append(("x", q))
    def dma_w(n):
        q, i = divmod(n, 15)
        A(f"s_add_u32 m0, s{sRing}, {(n % NR)*1024}")
        if o.relaid:
            A(f"s_mov_b32 s{sOff}, {q*61440 + i*1024}")
        else:
            A(f"s_mov_b32 s{sOff}, {i*262144 + q*65536}")
        A(f"buffer_load_dwordx4 v{VWS}, s[{SW}:{SW+3}], s{sOff} offen lds")
        vmq.append(("w", n))

    for k in range(5):
        dma_x(0, k)
    xs_pending = [(q, k) for q in (1, 2, 3) for k in range(5)]
    for n in range(NR):
        dma_w(n)
        if n >= o.xstart and xs_pending and o.xmode == "early":
            dma_x(*xs_pending.pop(0))
    A(f"s_add_u32 s{SO}, s16, s30")
    A(f"s_addc_u32 s{SO+1}, s17, 0")
    A(f"s_and_b32 s{SO+1}, s{SO+1}, 0xffff")
    A(f"s_mov_b32 s{SO+2}, 512000")
    A(f"s_mov_b32 s{SO+3}, 0x20000")
    A(f"v_and_b32 v{t0}, 31, v{lane}")
    A(f"v_lshrrev_b32 v{t1}, 5, v{lane}")
    A(f"s_lshl_b32 s35, s{sWave}, 1")
    A(f"v_add_u32 v{t2}, s35, v{t1}")
    for d in range(5):
        A(f"v_add_u32 v{t3}, {d}, v{t0}")
        A(f"v_bfe_u32 v{VA+d}, v{t3}, 1, 3")
        A(f"v_xor_b32 v{VA+d}, v{VA+d}, v{t2}")
        A(f"v_lshlrev_b32 v{VA+d}, 4, v{VA+d}")
        A(f"v_lshl_add_u32 v{VA+d}, v{t3}, 7, v{VA+d}")
        A(f"v_add_u32 v{VA+5+d}, {2*XPART}, v{VA+d}")
    A(f"v_lshlrev_b32 v{VO}, 12, v{t0}")
    A(f"v_lshl_add_u32 v{VO}, v{t1}, 4, v{VO}")
    A(f"s_lshl_b32 s35, s{sWave}, 10")
    A("s_add_u32 s35, s35, s33")
    A(f"s_lshl_b32 s36, s{sNt}, 5")
    A("s_add_u32 s35, s35, s36")
    A(f"v_add_u32 v{VO}, s35, v{VO}")
    A(f"v_lshlrev_b32 v{VB}, 9, v{t1}")
    A(f"v_bfe_u32 v{t2}, v{lane}, 2, 2")
    A(f"v_lshl_add_u32 v{VB}, v{t2}, 6, v{VB}")
    A(f"v_bfe_u32 v{t2}, v{lane}, 4, 1")
    A(f"v_lshl_add_u32 v{VB}, v{t2}, 5, v{VB}")
    A(f"v_and_b32 v{t2}, 1, v{lane}")
    A(f"v_lshl_add_u32 v{VB}, v{t2}, 4, v{VB}")
    A(f"v_bfe_u32 v{t2}, v{lane}, 1, 1")
    A(f"v_lshl_add_u32 v{VB}, v{t2}, 3, v{VB}")
    A(f"v_add_u32 v{VB}, s{sRing}, v{VB}")
    A(f"v_lshlrev_b32 v{t2}, 4, v{lane}")
    A(f"v_add_u32 v{VR}, s{sRing}, v{t2}")
    A(f"s_lshl_b32 s35, s{sWave}, 12")
    A(f"s_add_u32 s35, s35, {RING0}")
    A(f"v_add_u32 v{VR+1}, s35, v{t2}")

    lq = []
    def lg_wait(label):
        idx = max(i for i, l in enumerate(lq) if l == label)
        n = len(lq) - 1 - idx
        return min(n, 15)
    def rd_x(g):
        q, j = divmod(g, 18)
        c, d = j & 3, j >> 2
        r = VX + 4 * (g % NX)
        va = VA + d + (5 if q >= 2 else 0)
        A(f"ds_read_b128 v[{r}:{r+3}], v{va} offset:{(q & 1)*XPART + c*XCLS}")
        lq.append(("x", g))
    def rd_w(n):
        r = VW + 4 * (n % NW)
        off = (n % NR) * 1024
        A(f"ds_read_b64_tr_b16 v[{r}:{r+1}], v{VB} offset:{off}")
        lq.append(("w", n))
        A(f"ds_read_b64_tr_b16 v[{r+2}:{r+3}], v{VB} offset:{off+256}")
        lq.append(("w", n))

    A(f"s_waitcnt vmcnt({vm_wait(('x', 0))})")
    A("s_barrier")
    stamp()
    for g in range(4):
        rd_x(g)
    A(f"s_waitcnt vmcnt({vm_wait(('w', 0))})")
    rd_w(0)
    rd_x(4)
    A(f"s_waitcnt vmcnt({vm_wait(('w', 1))})")
    rd_w(1)
    xnext = 5
    xbar = {0}
    def need(n):
        q, i = divmod(n, 15)
        return 18 * q + i + 3
    for n in range(60):
        q, i = divmod(n, 15)
        g0 = 18 * q + i
        wr = VW + 4 * (n % NW)
        tgt = need(min(n + 2, 59))
        for look in (3, 4, 5):
            if n + look <= 59:
                tgt = max(tgt, need(n + look) - 2 * (look - 2))
        tgt = min(tgt, g0 + NX - 1, 71)
        xreads = list(range(xnext, tgt + 1))
        assert len(xreads) <= 2, (n, xreads)
        xnext = max(xnext, tgt + 1)
        def mfma(r):
            xr = VX + 4 * ((g0 + r) % NX)
            c = "0" if n == 0 else f"v[{ACC+16*r}:{ACC+16*r+15}]"
            A(f"v_mfma_f32_32x32x16_bf16 v[{ACC+16*r}:{ACC+16*r+15}], v[{wr}:{wr+3}], v[{xr}:{xr+3}], {c}")
        wl = min(lg_wait(("w", n)), lg_wait(("x", g0 + 3)))
        A(f"s_waitcnt lgkmcnt({wl})")
        mfma(0)
        for g in xreads[:1]:
            if g // 18 not in xbar:
                qq = g // 18
                lastq = 3 if o.xmode == "early" else qq
                A(f"s_waitcnt vmcnt({vm_wait(('x', lastq))})")
                A("s_barrier")
                for z in range(qq, lastq + 1):
                    xbar.add(z)
            rd_x(g)
        mfma(1)
        if n + 2 < 60:
            A(f"s_waitcnt vmcnt({vm_wait(('w', n + 2))})")
            rd_w(n + 2)
        mfma(2)
        if n + NR < 60:
            dma_w(n + NR)
        if xs_pending and (o.xmode == "early" or xs_pending[0][0] == q + 1):
            dma_x(*xs_pending.pop(0))
        mfma(3)
        for g in xreads[1:]:
            if g // 18 not in xbar:
                qq = g // 18
                lastq = 3 if o.xmode == "early" else qq
                A(f"s_waitcnt vmcnt({vm_wait(('x', lastq))})")
                A("s_barrier")
                for z in range(qq, lastq + 1):
                    xbar.add(z)
            rd_x(g)
        if i == 14:
            stamp()
    assert not xs_pending
    A("s_nop 7")
    A("s_nop 7")
    for r in range(4):
        for v in range(4):
            A(f"ds_write_b128 v{VR}, v[{ACC+16*r+4*v}:{ACC+16*r+4*v+3}] offset:{r*4096 + v*1024}")
    A("s_waitcnt lgkmcnt(0)")
    A("s_barrier")
    stamp()
    for s in range(4):
        for v in range(4):
            off = s * NR * 1024 + v * 1024
            if off > 65535:
                pass
            A(f"ds_read_b128 v[{16*s+4*v}:{16*s+4*v+3}], v{VR+1} offset:{off}")
    A("s_mov_b32 s35, 0x4038aa3b")
    A("s_mov_b32 s36, 0xbfb8aa3b")
    A("s_waitcnt lgkmcnt(8)")
    for v in range(0, 16, 2):
        A(f"v_pk_add_f32 v[{v}:{v+1}], v[{v}:{v+1}], v[{16+v}:{17+v}]")
    A("s_waitcnt lgkmcnt(0)")
    for v in range(0, 16, 2):
        A(f"v_pk_add_f32 v[{32+v}:{33+v}], v[{32+v}:{33+v}], v[{48+v}:{49+v}]")
    for v in range(0, 16, 2):
        A(f"v_pk_add_f32 v[{v}:{v+1}], v[{v}:{v+1}], v[{32+v}:{33+v}]")
    for v in range(8):
        A(f"v_mul_f32 v{v}, s35, v{v}")
        A(f"v_mul_f32 v{8+v}, s36, v{8+v}")
    for v in range(16):
        A(f"v_exp_f32 v{v}, v{v}")
    for v in range(16):
        A(f"v_add_f32 v{v}, 1.0, v{v}")
    for v in range(16):
        A(f"v_rcp_f32 v{v}, v{v}")
    for v in range(8):
        A(f"v_fma_f32 v{v}, v{v}, -2.0, 1.0")
    for v in range(8):
        A(f"v_mul_f32 v{v}, v{v}, v{8+v}")
    for v in range(4):
        A(f"v_cvt_pk_bf16_f32 v{16+v}, v{2*v}, v{2*v+1}")
    A(f"buffer_store_dwordx4 v[16:19], v{VO}, s[{SO}:{SO+3}], 0 offen")
    if o.stamps:
        stamp()
        A("s_waitcnt vmcnt(0)")
        stamp()
        A("s_memrealtime s[92:93]")
        A("s_waitcnt lgkmcnt(0)")
        A(f"s_add_u32 s{SD}, s20, 0x1000000")
        A(f"s_addc_u32 s{SD+1}, s21, 0")
        A(f"s_and_b32 s{SD+1}, s{SD+1}, 0xffff")
        A(f"s_mov_b32 s{SD+2}, 0x100000")
        A(f"s_mov_b32 s{SD+3}, 0x20000")
        A("s_lshl_b32 s3, s2, 2")
        A(f"s_add_u32 s3, s3, s{sWave}")
        A("s_lshl_b32 s3, s3, 7")
        A("v_mov_b32 v30, s3")
        for b in range(1, nstamp[0]):
            A(f"s_sub_u32 s3, s{STAMP+2*b}, s{STAMP}")
            A("v_mov_b32 v31, s3")
            A(f"buffer_store_dword v31, v30, s[{SD}:{SD+3}], 0 offen offset:{4*b}")
        A("v_mov_b32 v31, s90")
        A(f"buffer_store_dword v31, v30, s[{SD}:{SD+3}], 0 offen offset:{4*30}")
        A("v_mov_b32 v31, s92")
        A(f"buffer_store_dword v31, v30, s[{SD}:{SD+3}], 0 offen offset:{4*31}")
    A("L_end_" + name + ":")
    A("s_endpgm")
    return NV, RING0 + 4 * NR * 1024

def gen_relayout(A, name):
    A(f".globl {name}")
    A(".p2align 8")
    A(f".type {name},@function")
    A(f"{name}:")
    A("s_load_dwordx2 s[4:5], s[0:1], 8")
    A("s_load_dwordx2 s[8:9], s[0:1], 32")
    A("s_cmp_ge_u32 s2, 240")
    A("s_cbranch_scc1 L_end_" + name)
    A("v_and_b32 v1, 63, v0")
    A("v_lshrrev_b32 v2, 6, v0")
    A("v_lshrrev_b32 v3, 2, v1")
    A("v_lshlrev_b32 v3, 10, v3")
    A("v_and_b32 v4, 2, v1")
    A("v_lshlrev_b32 v4, 8, v4")
    A("v_and_b32 v5, 1, v1")
    A("v_lshlrev_b32 v5, 4, v5")
    A("v_add3_u32 v3, v3, v4, v5")
    A("v_lshl_add_u32 v3, v2, 5, v3")
    A("s_lshl_b32 s3, s2, 14")
    A("v_add_u32 v3, s3, v3")
    A("s_lshr_b32 s12, s2, 4")
    A("s_and_b32 s13, s2, 15")
    A("s_mul_i32 s13, s13, 15360")
    A("s_lshl_b32 s12, s12, 10")
    A("s_add_u32 s12, s12, s13")
    A("s_mov_b32 s14, 245760")
    A("v_mul_lo_u32 v6, v2, s14")
    A("v_lshl_add_u32 v6, v1, 4, v6")
    A("v_add_u32 v6, s12, v6")
    A("s_waitcnt lgkmcnt(0)")
    A("s_and_b32 s5, s5, 0xffff")
    A("s_mov_b32 s6, 3932160")
    A("s_mov_b32 s7, 0x20000")
    A("s_and_b32 s9, s9, 0xffff")
    A("s_mov_b32 s10, 3932160")
    A("s_mov_b32 s11, 0x20000")
    for z in range(4):
        A(f"buffer_load_dwordx4 v[{8+4*z}:{11+4*z}], v3, s[4:7], 0 offen offset:{128*z}")
    for z in range(4):
        A(f"s_mov_b32 s15, {z*4*245760}")
        A(f"s_waitcnt vmcnt(3)")
        A(f"buffer_store_dwordx4 v[{8+4*z}:{11+4*z}], v6, s[8:11], s15 offen")
    A("L_end_" + name + ":")
    A("s_endpgm")

def build(o):
    A = Asm()
    body = Asm()
    body('.amdgcn_target "amdgcn-amd-amdhsa--gfx950"')
    body(".text")
    nv, lds = gen_main(body, KNAME, o)
    launches = []
    kds = kd(KNAME, nv)
    if o.relaid:
        gen_relayout(body, "relayout_kernel")
        launches.append("; @launch kernel=relayout_kernel grid=(240,1,1) block=(256,1,1) lds=0")
        kds += ".p2align 6\n" + kd("relayout_kernel", 24, 32)
    if o.empty:
        body(".globl empty_kernel\n.p2align 8\n.type empty_kernel,@function\nempty_kernel:\ns_endpgm")
        launches.insert(0, "; @launch kernel=empty_kernel grid=(256,1,1) block=(256,1,1) lds=0")
        kds += ".p2align 6\n" + kd("empty_kernel", 8, 16)
    if launches:
        launches.append(f"; @launch kernel={KNAME} grid=(256,1,1) block=(256,1,1) lds={lds}")
    else:
        launches.append(f"; @launch grid=(256,1,1) block=(256,1,1) lds={lds}")
    body(".fill 1024, 4, 0xbf810000") if o.codepf else None
    return HDR + "\n".join(launches) + "\n" + body.text() + '.section .rodata,"a"\n.p2align 6\n' + kds, lds

def opts(argv=None):
    p = argparse.ArgumentParser()
    p.add_argument("-o", default="/dev/stdout")
    p.add_argument("--NR", type=int, default=16)
    p.add_argument("--relaid", type=int, default=0)
    p.add_argument("--empty", type=int, default=0)
    p.add_argument("--stamps", type=int, default=0)
    p.add_argument("--codepf", type=int, default=0)
    p.add_argument("--xmode", default="staged")
    p.add_argument("--xstart", type=int, default=3)
    return p.parse_args(argv)

if __name__ == "__main__":
    o = opts()
    t, lds = build(o)
    open(o.o, "w").write(t)
```

```python
import sys, argparse, re

KNAME = "standalone__autoregressive_conv_wavernn__speech_kernel"
HDR = """; Kernarg layout for this problem (40 bytes, ptrs only, base s[0:1]):
"""
XPART, XCLS, XWV = 20480, 2304, 5120
RING0 = 2 * XPART
OOB = 0x7ffffff0
EPC = 0x9e3779b1

def regs_of(tok):
    m = re.fullmatch(r"([va])\[(\d+):(\d+)\]", tok)
    if m:
        return {(m.group(1), i) for i in range(int(m.group(2)), int(m.group(3)) + 1)}
    m = re.fullmatch(r"-?([va])(\d+)", tok)
    if m:
        return {(m.group(1), int(m.group(2)))}
    return set()

TRANS = ("v_exp_f32", "v_rcp_f32")
def fix_hazards(lines):
    out = []
    hist = []
    def dist_needed(pred, need):
        d = 0
        for h in reversed(hist):
            if d >= need:
                return 0
            if pred(h):
                return need - d
            d += h["w"]
        return 0
    for ln in lines:
        s = ln.split(";")[0].strip()
        if not s or s.endswith(":") or s.startswith("."):
            out.append(ln)
            continue
        mn, *rest = s.split(None, 1)
        ops = [t.strip() for t in rest[0].split(",")] if rest else []
        ops = [t.split()[0] if t else t for t in ops]
        h = dict(mn=mn, w=1, wr=set(), rd=set(), mf=False, valu=False, c=set(), swr=set(), store=False)
        if mn == "s_nop":
            h["w"] = int(ops[0]) + 1
        isv = mn.startswith("v_")
        if mn.startswith("v_mfma"):
            h["mf"] = True
            h["wr"] = regs_of(ops[0]); h["rd"] = regs_of(ops[1]) | regs_of(ops[2]); h["c"] = regs_of(ops[3])
        elif isv:
            h["valu"] = True
            if mn.startswith("v_cmp") or mn.startswith("v_readfirstlane"):
                h["swr"] = {ops[0]}
                for t in ops[1:]: h["rd"] |= regs_of(t)
            else:
                h["wr"] = regs_of(ops[0])
                for t in ops[1:]: h["rd"] |= regs_of(t)
                if "_co_" in mn: h["swr"] = {"vcc"}
        elif mn.startswith("buffer_store") or mn.startswith("ds_write"):
            for t in ops: h["rd"] |= regs_of(t)
            h["store"] = mn.endswith("x4") or mn.endswith("x3")
            h["data"] = regs_of(ops[0])
        elif mn.startswith("buffer_load") or mn.startswith("global_load"):
            if s.endswith(" lds"):
                h["rd"] = regs_of(ops[0])
            else:
                h["wr"] = regs_of(ops[0]); h["rd"] = regs_of(ops[1])
        elif mn.startswith("ds_read"):
            h["wr"] = regs_of(ops[0]); h["rd"] = regs_of(ops[1])
        n = 0
        touch = h["wr"] | h["rd"]
        if h["mf"]:
            n = max(n, dist_needed(lambda p: p["valu"] and p["wr"] & (h["rd"] | h["c"]), 2))
            n = max(n, dist_needed(lambda p: p["mf"] and p["wr"] & h["rd"], 8))
            n = max(n, dist_needed(lambda p: p["mf"] and (p["wr"] & h["c"]) and p["wr"] != h["c"], 6))
        elif touch:
            n = max(n, dist_needed(lambda p: p["mf"] and p["wr"] & touch, 8))
        if h["valu"]:
            n = max(n, dist_needed(lambda p: p["mf"] and p["c"] & h["wr"], 3))
            n = max(n, dist_needed(lambda p: p["store"] and p["data"] & h["wr"], 2))
            if mn not in TRANS:
                n = max(n, dist_needed(lambda p: p["mn"] in TRANS and p["wr"] & h["rd"], 1))
            if mn.startswith("v_readfirstlane"):
                n = max(n, dist_needed(lambda p: p["valu"] and p["wr"] & h["rd"], 1))
            sread = {t for t in ops[1:] if re.fullmatch(r"s\d+|vcc|s\[\d+:\d+\]", t)}
            n = max(n, dist_needed(lambda p: p["valu"] and p["swr"] & sread, 2))
        elif h["wr"]:
            n = max(n, dist_needed(lambda p: p["store"] and p["data"] & h["wr"], 1))
        if mn.startswith("buffer_") and s.endswith(" lds"):
            n = max(n, dist_needed(lambda p: p["mn"].startswith("s_") and p.get("m0"), 1))
        if mn.startswith("s_") and ops and ops[0] == "m0":
            h["m0"] = True
        if n:
            out.append(f"s_nop {n-1}")
            hist.append(dict(mn="s_nop", w=n, wr=set(), rd=set(), mf=False, valu=False, c=set(), swr=set(), store=False))
        out.append(ln)
        hist.append(h)
        hist = hist[-24:]
    return out

def gen_main(name, o):
    L = []
    A = L.append
    NR = o.NR
    ACC = 0
    VA = 32
    VB = 38
    VXS = 40
    VWS = 45
    VO = 49
    VE = 51
    VFL = 52
    VFP = 53
    VEP = 54
    VFV = 55
    VPF = 80
    VPD = 57
    LANE = 58
    VIN = 60
    VT = 72
    VPOOL = 96
    nvp = (256 - VPOOL) // 4
    pool = [f"v[{VPOOL+4*i}:{VPOOL+4*i+3}]" for i in range(nvp)] + [f"a[{4*i}:{4*i+3}]" for i in range(o.nacc)]
    NV = 256 + 4 * o.nacc
    SX, SW, SO, SWS = 8, 12, 16, 20
    sWave, sSig, sXb, sXl, sT, sT2 = 24, 25, 26, 27, 28, 29
    sSend, sRecv = 30, 33
    sRec = 36
    sC1, sC2, sA1, sB1, sA2, sB2 = 37, 38, 39, 40, 41, 42
    sMask = 44
    sSpin = 46
    sP1 = 47
    sTap = 48
    STAMP = 64
    nst = [0]
    def stamp_txt():
        if not o.stamps: return []
        r = STAMP + 2 * nst[0]; nst[0] += 1
        return [f"{'s_memrealtime' if o.rt else 's_memtime'} s[{r}:{r+1}]"]
    def stamp():
        for t in stamp_txt(): A(t)

    own = [3, 7]
    M = []
    nd = o.nd
    for c in range(3):
        i0 = 0
        for T in o.groups[c]:
            for r in range(8):
                for i in range(i0, i0 + T):
                    if r in own and 15 * c + i >= nd: continue
                    M.append((c, i, r))
            i0 += T
        assert i0 == 15
    assert nd <= 45
    pair_done = {}
    i0 = 0
    for T in o.groups[3][:-1]:
        for r in [0, 4, 2, 6, 1, 5]:
            for i in range(i0, i0 + T):
                M.append((3, i, r))
        i0 += T
    for a in (0, 2, 1):
        for r in (a, a + 4):
            for i in range(i0, 15):
                M.append((3, i, r))
        pair_done[a] = len(M) - 1
    ph2 = len(M)
    dchunks = [c for c in (3, 2, 1, 0) if 15 * c + 14 >= nd]
    if len(dchunks) > 2 and nd % 15:
        dchunks[-1], dchunks[-2] = dchunks[-2], dchunks[-1]
    for c in dchunks:
        for r in own:
            for i in range(15):
                if 15 * c + i >= nd: M.append((c, i, r))
    NM = len(M)
    assert NM == 480 and len(set(M)) == 480
    last_of = {r: max(k for k, m in enumerate(M) if m[2] == r) for r in range(8)}
    first_of = {r: min(k for k, m in enumerate(M) if m[2] == r) for r in range(8)}

    inst = {}
    use = []
    for k, (c, i, r) in enumerate(M):
        wk = ("w", 15 * c + i)
        xk = ("x", c, r + i, 1 if (k >= ph2 and c < 4 - o.keep) else 0)
        for key in (wk, xk):
            d = inst.setdefault(key, dict(first=k, last=k))
            d["last"] = k
        use.append((wk, xk))
    order = sorted(inst, key=lambda key: (inst[key]["first"], key[0] == "w"))
    reads = []
    for key in order:
        reads += [(key, 0)] if key[0] == "x" else [(key, 0), (key, 1)]
    pubs = []
    n0 = 0
    for T in o.pub:
        pubs.append([("w", n) for n in range(n0, n0 + T)])
        n0 += T
    assert n0 == 60
    pubs[0].append(("x", 0))
    src_of = lambda key: ("w", key[1]) if key[0] == "w" else ("x", key[1] >> 1)
    first_read = {}
    last_read = {}
    for t, (key, half) in enumerate(reads):
        first_read.setdefault(src_of(key), t)
        last_read[src_of(key)] = t
    tpub = [min(first_read[d] for d in g) for g in pubs]
    gi = max(i for i, t in enumerate(tpub) if t <= first_read[("x", 1)])
    pubs[gi].append(("x", 1))
    pub_at = {tpub[i]: pubs[i] for i in range(len(pubs))}
    dmas = [("x", 0, z) for z in range(5)]
    for n in range(60):
        dmas.append(("w", n))
        if o.x1at <= n < o.x1at + 5 * o.x1step and (n - o.x1at) % o.x1step == 0:
            dmas.append(("x", 1, (n - o.x1at) // o.x1step))
    excl = {}
    def reserve(k, tag):
        while k in excl: k += 1
        excl[k] = tag
        return k
    for it in (o.pfs.split(",") if o.pfs else []):
        p_, kind = it.split(":")
        if int(p_) >= 0: reserve(int(p_), ("pf", kind))
    kk = o.d0
    nd_ = 0
    for d in dmas[o.NP:]:
        g = int(kk + 0.5)
        while g in excl or g - 1 in excl: g += 1
        excl[g] = ("dma", d)
        nd_ += 1
        kk += o.pace0 if nd_ < o.n0 else o.pace
        if nd_ == o.n0: kk += o.pause
    klast = g
    kp = o.kpoison if o.kpoison > 0 else klast + 2
    reserve(kp, "E")
    for a in range(3): reserve(kp + 2 + o.pz * a, ("poison", a))
    reserve(o.kflag, "flag"); reserve(o.kpoll, "poll")
    pos = [0] * len(reads)
    bpos = {}
    nxt = NM
    for t in range(len(reads) - 1, -1, -1):
        p = min(inst[reads[t][0]]["first"] - o.margin, nxt - 1)
        while p in excl: p -= 1
        pos[t] = p
        nxt = p
        if t in pub_at:
            p -= 1
            while p in excl or p - 1 in excl: p -= 1
            bpos[t] = p
            nxt = p
    prev = -1
    for t in range(len(reads)):
        if inst[reads[t][0]]["first"] < 8 and t < 10:
            pos[t] = -1
            continue
        if t in pub_at:
            p = max(bpos[t], prev + 1)
            while p in excl: p += 1
            bpos[t] = prev = p
        p = max(pos[t], prev + 1)
        while p in excl: p += 1
        pos[t] = prev = p
        assert pos[t] < inst[reads[t][0]]["first"], (t, reads[t], pos[t])
    for t in pub_at:
        if pos[t] >= 0: excl[bpos[t]] = ("bar", t)
    free = [(-10**9, s) for s in pool]
    for t, (key, half) in enumerate(reads):
        if half == 0:
            free.sort()
            assert free[0][0] + 1 <= pos[t], ("out of fragment registers", key, pos[t], free[0])
            _, s = free.pop(0)
            inst[key]["reg"] = s
            free.append((inst[key]["last"], s))

    vmq, lq = [], []
    state = dict(vm_done=-1, lg_done=-1, bar_lg=-1)
    def vm_wait_txt(labels):
        idx = max(i for i, l in enumerate(vmq) if l in labels)
        for l in labels: assert vmq.count(l) == (5 if l[0] == "x" else 1), l
        if idx <= state["vm_done"]: return []
        state["vm_done"] = idx
        n = len(vmq) - 1 - idx
        assert n <= 63
        return [f"s_waitcnt vmcnt({n})"]
    published = set()
    def emit_pub(t, lg=None):
        n = 1
        w = vm_wait_txt(pub_at[t])
        if lg is not None:
            w = [(w[0] + " " if w else "s_waitcnt ") + f"lgkmcnt({lg})"]
        for x in w: A(x); n += 1
        A("s_barrier")
        state["bar_lg"] = state["lg_done"]
        published.add(t)
        if t == 0: stamp()
        return n
    def emit_read(t, gap):
        key, half = reads[t]
        n = 0
        if t in pub_at and t not in published:
            n += emit_pub(t)
        reg = inst[key]["reg"]
        if key[0] == "x":
            _, c, j, _ = key
            va = VA + 2 * (j >> 3) + (c & 1)
            A(f"ds_read_b128 {reg}, v{va} offset:{(c >> 1)*XPART + (j & 3)*XWV + ((j >> 2) & 1)*XCLS}")
        else:
            slot = key[1] % NR
            m = re.fullmatch(r"([va])\[(\d+):\d+\]", reg)
            b = int(m.group(2)) + 2 * half
            A(f"ds_read_b64_tr_b16 {m.group(1)}[{b}:{b+1}], v{VB + (slot >= 15)} offset:{(slot % 15)*4096 + half*512}")
        lq.append((key, gap))
        return n + 1
    def lg_wait(keys, k, emit=True):
        idx = max(i for i, l in enumerate(lq) if l[0] in keys)
        if idx <= state["lg_done"]: return 0 if emit else None
        old = [i for i, l in enumerate(lq) if l[1] <= k - o.lat]
        if old: idx = max(idx, old[-1])
        n = len(lq) - 1 - idx
        if n > 15:
            n = 15; idx = len(lq) - 1 - 15
        state["lg_done"] = idx
        if not emit: return n
        A(f"s_waitcnt lgkmcnt({n})")
        return 1
    def dma_txt(d):
        if d[0] == "x":
            _, p, z = d
            so = "0" if p == 0 else f"s{sP1}"
            return [f"s_add_u32 m0, s{sXb}, {p*XPART + z*1024}",
                    f"buffer_load_dwordx4 v{VXS+z}, s[{SX}:{SX+3}], {so} offen {o.xflags} lds"]
        c, i = divmod(d[1], 15)
        so = "0" if i == 0 else f"s{sTap+i}"
        return [f"s_add_u32 m0, s{sXl}, {RING0 + (d[1] % NR)*4096}",
                f"buffer_load_dwordx4 v{VWS+c}, s[{SW}:{SW+3}], {so} offen {o.wflags} lds"]
    def dma_ok(d):
        if d[0] == "w" and d[1] >= NR:
            t = last_read[("w", d[1] - NR)]
            return t < len(lq) and t <= state["bar_lg"]
        return True
    pfl = []
    for it in (o.pfs.split(",") if o.pfs else []):
        p_, kind = it.split(":")
        pfl.append((int(p_), kind))
    def pf_txt(kind):
        vmq.append(("pf", kind))
        r = VPF + [k_ for _, k_ in pfl].index(kind)
        srd = SX if kind == "x" else SW
        return [f"buffer_load_dword v{VPD}, v{r}, s[{srd}:{srd+3}], 0 offen {o.pfflags}"]

    t0, t1, t2, t3, t4, t5 = VT, VT + 1, VT + 2, VT + 3, VT + 4, VT + 5
    if o.map == 0:
        bKh, bTau, bMt, bPar, bBat = 2, 3, 4, 6, 7
    elif o.map == 1:
        bKh, bTau, bMt, bPar, bBat = 4, 3, 5, 7, 2
    else:
        bKh, bTau, bMt, bPar, bBat = 1, 0, 4, 6, 7
    sKh, sJ, sU, sBat, sSl, sX0 = 38, 40, 42, 63, 48, 46
    A(f".globl {name}")
    if o.align: A(".p2align 12")
    A(".p2align 8")
    A(f".type {name},@function")
    A(f"{name}:")
    stamp()
    if o.stamps: A("s_memrealtime s[96:97]")
    if o.diag: A("s_memrealtime s[94:95]")
    A("s_load_dwordx4 s[4:7], s[0:1], 0")
    A(f"s_load_dwordx2 s[{SO}:{SO+1}], s[0:1], 16")
    A(f"s_load_dwordx2 s[{SWS}:{SWS+1}], s[0:1], 32")
    A("s_cmp_ge_u32 s2, 256")
    A("s_cbranch_scc1 L_end")
    A(f"v_lshrrev_b32 v{t5}, 6, v0")
    A(f"v_and_b32 v{LANE}, 63, v0")
    A(f"v_readfirstlane_b32 s{sWave}, v{t5}")
    if o.codepf:
        A("s_getpc_b64 s[30:31]")
        A(f"v_min_u32 v{t0}, {o.codepf - 1}, v0")
        A(f"v_lshlrev_b32 v{t0}, 7, v{t0}")
        A(f"v_mov_b32 v{t1}, s31")
        A(f"v_add_co_u32 v{t0}, vcc, s30, v{t0}")
        A(f"s_bfe_u32 s{sKh}, s2, {0x10000 + bKh}")
        A(f"s_bfe_u32 s61, s2, {0x10000 + bTau}")
        A(f"v_addc_co_u32 v{t1}, vcc, 0, v{t1}, vcc")
        A(f"global_load_dword v{VPD}, v[{t0}:{t1}], off")
        vmq.append("code")
    else:
        A(f"s_bfe_u32 s{sKh}, s2, {0x10000 + bKh}")
        A(f"s_bfe_u32 s61, s2, {0x10000 + bTau}")
    A(f"s_lshl1_add_u32 s{sSig}, s{sKh}, s61")
    A(f"s_bfe_u32 s{sU}, s2, {0x20000 + bMt}")
    A(f"s_mul_i32 s{sU}, s{sU}, 125")
    A(f"s_sub_u32 s{sU}, s{sU}, s{sSig}")
    A(f"s_bfe_u32 s3, s2, {0x10000 + bPar}")
    A(f"s_lshl1_add_u32 s{sU}, s{sU}, s3")
    A(f"s_lshl_b32 s{sU}, s{sU}, 9")
    A(f"s_bfe_u32 s{sBat}, s2, {0x10000 + bBat}")
    A(f"s_mul_i32 s{sBat}, s{sBat}, 512000")
    A(f"s_lshl_b32 s{sXl}, s{sWave}, 10")
    A(f"s_lshl_b32 s3, s{sKh}, 8")
    A(f"s_add_u32 s3, s3, s{sU}")
    A(f"s_add_u32 s3, s3, s{sXl}")
    A(f"s_sub_u32 s{sX0}, s3, 14336")
    A(f"v_lshrrev_b32 v{t0}, 3, v{LANE}")
    A(f"v_and_b32 v{t4}, 7, v0")
    A(f"v_and_b32 v{t1}, 6, v{t0}")
    A(f"v_xor_b32 v{t1}, v{t1}, v{t4}")
    A(f"v_lshl_add_u32 v{t1}, v{t1}, 4, s{sX0}")
    A(f"v_lshl_add_u32 v{VXS}, v{t0}, 13, v{t1}")
    A(f"v_add_u32 v{t2}, 6, v{t0}")
    A(f"v_and_b32 v{t1}, 6, v{t2}")
    A(f"v_xor_b32 v{t1}, v{t1}, v{t4}")
    A(f"s_add_u32 s3, s{sX0}, 4096")
    A(f"v_lshl_add_u32 v{t1}, v{t1}, 4, s3")
    A(f"v_lshl_add_u32 v{VXS+3}, v{t2}, 13, v{t1}")
    A(f"v_cmp_gt_u32 vcc, 2, v{t0}")
    A(f"v_add_u32 v{t1}, 0x20000, v{VXS}")
    A(f"v_add_u32 v{t2}, 0xffff0000, v{VXS+3}")
    A(f"v_cndmask_b32 v{VXS+2}, v{t2}, v{t1}, vcc")
    A(f"v_add_u32 v{VXS+1}, 0x10000, v{VXS}")
    A(f"s_mul_i32 s{sXb}, s{sWave}, {XWV}")
    A(f"s_lshl_b32 s{sSl}, s{sKh}, 8")
    A(f"s_add_u32 s{sSl}, s{sSl}, s61")
    A(f"s_and_b32 s{sJ}, s2, 3" if o.map != 2 else f"s_bfe_u32 s{sJ}, s2, 0x20002")
    A(f"s_lshl2_add_u32 s{sSl}, s{sSl}, s{sJ}")
    A(f"s_lshl_b32 s{sSl}, s{sSl}, 7")
    A(f"s_lshl_b32 s3, s{sWave}, 13")
    A(f"s_add_u32 s{sSl}, s{sSl}, s3")
    A(f"s_and_b32 s3, s{sWave}, 1")
    A("s_lshl_b32 s3, s3, 2")
    A(f"v_and_or_b32 v{t1}, v{t0}, 2, s3")
    A(f"v_xor_b32 v{t1}, v{t1}, v{t4}")
    A(f"v_lshl_add_u32 v{t1}, v{t1}, 4, s{sSl}")
    A(f"v_lshl_add_u32 v{VWS}, v{t0}, 10, v{t1}")
    A(f"s_mov_b32 s{SX+2}, 512000")
    A(f"s_mov_b32 s{SX+3}, 0x20000")
    A(f"s_mov_b32 s{SW+2}, 3932160")
    A(f"s_mov_b32 s{SW+3}, 0x20000")
    A("s_waitcnt lgkmcnt(0)")
    stamp()
    A(f"s_add_u32 s{SX}, s4, s{sBat}")
    A(f"s_addc_u32 s{SX+1}, s5, 0")
    A(f"s_mov_b32 s{SW}, s6")
    A(f"s_mov_b32 s{SW+1}, s7")
    mid = []
    B = mid.append
    B(f"v_cmp_gt_u32 vcc, 4, v{t0}")
    B(f"v_add_u32 v{VXS+4}, 0x10000, v{VXS+3}")
    B(f"v_mov_b32 v{t5}, {OOB}")
    B(f"v_cndmask_b32 v{VXS+4}, v{t5}, v{VXS+4}, vcc")
    assert o.map != 1 and len(pfl) <= 4
    for n_, (p_, kind) in enumerate(pfl):
        r = VPF + n_
        if kind[0] == "w":
            c0, nc = int(kind[1]), len(kind) - 1
            if n_ == 0:
                B(f"s_lshr_b32 s{sT}, s2, {bMt}")
                B(f"s_lshl_b32 s{sT}, s{sT}, 18")
                B(f"s_add_u32 s{sT}, s{sT}, s{sSl}")
                B(f"v_lshl_add_u32 v{t3}, v{t4}, 10, s{sT}")
                B(f"v_lshl_add_u32 v{t3}, v{t0}, 15, v{t3}")
            B(f"v_cmp_gt_u32 vcc, {nc}, v{t0}")
            B(f"v_add_u32 v{r}, {c0*32768}, v{t3}")
            B(f"s_nop 0")
            B(f"v_cndmask_b32 v{r}, v{t5}, v{r}, vcc")
        else:
            B(f"s_bfe_u32 s{sT2}, s2, {0x10000 + (3 if o.map == 2 else bTau)}")
            B(f"s_lshl_b32 s{sT2}, s{sT2}, 12")
            B(f"s_add_u32 s{sT2}, s{sT2}, s{sX0}")
            B(f"v_cmp_gt_u32 vcc, 18, v{LANE}")
            B(f"v_lshl_add_u32 v{r}, v{LANE}, 13, s{sT2}")
            B(f"v_add_u32 v{r}, 128, v{r}")
            B(f"v_cndmask_b32 v{r}, v{t5}, v{r}, vcc")
    npfmid = len(mid)
    for i in range(1, 15): B(f"s_mov_b32 s{sTap+i}, {i*262144}")
    B(f"v_and_b32 v{t0}, 15, v{LANE}")
    B(f"v_lshrrev_b32 v{t1}, 4, v{LANE}")
    for d in range(3):
        if d: B(f"v_add_u32 v{t2}, {d}, v{t0}")
        md = t2 if d else t0
        B(f"v_and_b32 v{t3}, 6, v{md}")
        B(f"v_xor_b32 v{t3}, v{t3}, v{t1}")
        B(f"v_lshlrev_b32 v{t3}, 4, v{t3}")
        B(f"v_lshl_add_u32 v{VA+2*d}, v{md}, 7, v{t3}")
    B(f"v_lshrrev_b32 v{t2}, 2, v{t0}")
    B(f"v_lshl_add_u32 v{t2}, v{t1}, 3, v{t2}")
    B(f"v_bfe_u32 v{t3}, v{LANE}, 3, 2")
    B(f"v_xor_b32 v{t3}, s{sWave}, v{t3}")
    B(f"v_lshlrev_b32 v{t3}, 5, v{t3}")
    B(f"v_lshl_add_u32 v{t3}, v{t2}, 7, v{t3}")
    B(f"v_and_b32 v{t2}, 3, v{LANE}")
    B(f"v_lshl_add_u32 v{t3}, v{t2}, 3, v{t3}")
    B(f"v_add_u32 v{VB}, {RING0}, v{t3}")
    B(f"v_add_u32 v{VB+1}, {RING0 + 15*4096}, v{t3}")
    for d in range(3): B(f"v_xor_b32 v{VA+2*d+1}, 64, v{VA+2*d}")
    for c in range(1, 4): B(f"v_add_u32 v{VWS+c}, {c*32768}, v{VWS}")
    B(f"s_movk_i32 s{sP1}, 128")
    late = []
    B = late.append
    B([f"s_add_u32 s{SO}, s{SO}, s{sBat}", f"s_addc_u32 s{SO+1}, s{SO+1}, 0"])
    B(f"s_mov_b32 s{SO+2}, 512000")
    B(f"s_mov_b32 s{SO+3}, 0x20000")
    B(f"s_mov_b32 s{SWS+2}, 0x2000000")
    B(f"s_mov_b32 s{SWS+3}, 0x20000")
    B(f"s_lshr_b32 s3, s2, {bMt}")
    if o.map != 1:
        B(f"s_lshl2_add_u32 s3, s3, s{sJ}")
    else:
        B("s_and_b32 s4, s2, 7")
        B("s_lshl3_add_u32 s3, s3, s4")
    B(f"s_lshl2_add_u32 s4, s3, s{sWave}")
    B("s_mul_i32 s4, s4, 640")
    B(f"s_add_u32 s{sRec}, s4, {(3 << 20) + 4096}")
    B("s_lshl_b32 s3, s3, 14")
    B(f"s_add_u32 s3, s3, s{sXl}")
    B(f"s_lshl_b32 s5, s{sSig}, 12")
    B("s_add_u32 s5, s5, s3")
    for a in range(3):
        B(f"s_sub_u32 s4, s{sSig}, {a+1}")
        B("s_and_b32 s4, s4, 3")
        B("s_lshl_b32 s4, s4, 12")
        B(f"s_add_u32 s{sSend+a}, s4, s3")
        B([f"s_cmp_le_u32 s{sSig}, {2-a}", "s_cselect_b32 s4, 8, 0"])
        B(f"s_add_u32 s{sRecv+a}, s5, s4")
        if a < 2:
            B("s_add_u32 s3, s3, 0x100000")
            B("s_add_u32 s5, s5, 0x100000")
    B(f"v_lshlrev_b32 v{VE}, 4, v{LANE}")
    for q in range(4): B(f"v_mov_b32 v{VIN+q}, -1")
    B(f"v_mov_b32 v{VEP}, 0")
    B(f"v_mov_b32 v{t3}, {OOB}")
    B(f"s_lshl_b32 s4, s{sSig}, 7")
    B(f"v_add_u32 v{t2}, s4, v{VE}")
    B(f"v_cmp_gt_u32 vcc, 8, v{LANE}")
    B(f"v_and_b32 v{VFP}, 3, v{LANE}")
    B(f"v_lshlrev_b32 v{VFP}, 7, v{VFP}")
    B(f"v_cndmask_b32 v{VFL}, v{t3}, v{t2}, vcc")
    B(f"v_mov_b32 v{VEP+1}, 0")
    B(f"v_mov_b32 v{VEP+2}, 0")
    B(f"s_lshl2_add_u32 s3, s{sJ}, s{sWave}")
    B("s_lshl_b32 s3, s3, 5")
    B(f"s_add_u32 s3, s3, s{sU}")
    B("s_add_u32 s3, s3, 3072")
    B(f"v_lshl_add_u32 v{t2}, v{t1}, 3, s3")
    B(f"v_lshl_add_u32 v{VO}, v{t0}, 13, v{t2}")
    B([f"s_cmp_eq_u32 s{sSig}, 3", "s_cselect_b32 s3, 16, 15"])
    B([f"s_cmp_eq_u32 s{sSig}, 3", f"s_cselect_b32 s{sMask+1}, -1, 0x7fffffff"])
    B(f"v_cmp_gt_u32 vcc, s3, v{t0}")
    B(f"v_add_u32 v{VO+1}, 4096, v{VO}")
    B(f"s_mov_b32 s{sMask}, -1")
    B(f"v_cndmask_b32 v{VO+1}, v{t3}, v{VO+1}, vcc")
    B(f"s_mov_b32 s4, 0x4038aa3b")
    B([f"s_bitcmp1_b32 s{sSig}, 0", f"s_cselect_b32 s{sC1}, 0xbfb8aa3b, s4"])
    B([f"s_bitcmp1_b32 s{sSig}, 0", f"s_cselect_b32 s{sA1}, 0, 1.0"])
    B([f"s_bitcmp1_b32 s{sSig}, 0", f"s_cselect_b32 s{sA2}, 1.0, 0"])
    if o.stamps: B("s_mov_b32 s43, 0")
    di = 0
    pfq = list(pfl)
    nmid0 = len(mid)
    while di < o.NP:
        while pfq and pfq[0][0] <= di - 1000:
            while nmid0 - len(mid) < npfmid: A(mid.pop(0))
            for x in pf_txt(pfq.pop(0)[1]): A(x)
        tx = dma_txt(dmas[di])
        if dmas[di][0] == "w" and dmas[di][1] > 0:
            while nmid0 - len(mid) < npfmid + dmas[di][1]: A(mid.pop(0))
        A(tx[0])
        if mid: A(mid.pop(0))
        A(tx[1])
        vmq.append(dmas[di][:2]); di += 1
        for _ in range(o.midn if di < o.NPa else len(mid)):
            if mid: A(mid.pop(0))
        if di == o.NPa and o.latepro:
            for it in late:
                for x in ([it] if isinstance(it, str) else it): A(x)
            late = []
    assert not mid
    while pfq and pfq[0][0] < 0:
        for x in pf_txt(pfq.pop(0)[1]): A(x)

    side = []
    hq = []
    slow = []
    def vm(txt, label):
        def f():
            vmq.append(label); return [txt]
        f.vm = True
        return f
    def wait(labels):
        return lambda: vm_wait_txt(labels)
    ws = f"s[{SWS}:{SWS+3}]"
    side.append((-1, [it if isinstance(it, str) else (lambda it=it: it) for it in late]))
    fixed = {}
    fixed["E"] = vm(f"buffer_load_dword v{VEP}, v{VEP}, {ws}, s{sRec} offen sc1", "E")
    for a in range(3):
        fixed[("poison", a)] = vm(f"buffer_store_dwordx4 v[{VIN}:{VIN+3}], v{VE}, {ws}, s{sSend+a} offen sc1", ("poison", a))
    side.append((o.kflag - 12, [wait(["E"]), f"v_add_u32 v{VEP}, {EPC}, v{VEP}", lambda: state.update(ep=1) or []]))
    def flag():
        assert state.get("ep")
        return vm_wait_txt([("poison", 2)]) + vm(f"buffer_store_dwordx4 v[{VEP}:{VEP+3}], v{VFL}, {ws}, s{sRec} offen offset:128 sc1", "flag")()
    fixed["flag"] = flag
    fixed["poll"] = vm(f"buffer_load_dword v{VFV}, v{VFP}, {ws}, s{sRec} offen offset:128 sc1", "poll")
    for _, kind in pfq: fixed[("pf", kind)] = (lambda kind=kind: pf_txt(kind))
    def slowloop(tag, loads, chk, inc):
        n = len(loads)
        sl = [f"L_slow{tag}:", f"s_mov_b32 s{sSpin}, 0"]
        for _ in range(o.depth - 1):
            sl += loads + [f"s_sleep {o.nap}"]
        sl.append(f"L_slow{tag}1:")
        if o.stamps: sl.append(f"s_add_u32 s43, s43, {inc}")
        sl += loads + [f"s_add_u32 s{sSpin}, s{sSpin}, 1", f"s_cmp_gt_u32 s{sSpin}, {o.spin}", "s_cbranch_scc1 L_end",
               f"s_waitcnt vmcnt({n * (o.depth - 1)})"] + chk + [f"s_cbranch_vccnz L_slow{tag}1", f"s_branch L_back{tag}"]
        slow.extend(sl)
    side.append((o.kcheck, [wait(["poll"]), f"v_cmp_ne_u32 vcc, v{VFV}, v{VEP}",
                            lambda: state.update(flagok=1) or ["s_cbranch_vccnz L_slowf", "L_backf:"]]))
    slowloop("f", [f"buffer_load_dword v{VFV}, v{VFP}, {ws}, s{sRec} offen offset:128 sc1"], [f"v_cmp_ne_u32 vcc, v{VFV}, v{VEP}"], 1)
    def send(a):
        b0, b1 = ACC + 4 * a, ACC + 4 * (a + 4)
        p = []
        for q in range(4): p.append(f"v_mul_f32 v{b0+q}, s{sC1}, v{b0+q}")
        p.append(f"v_cvt_pk_bf16_f32 v{b0}, v{b0}, v{b0+1}")
        p.append(f"v_cvt_pk_bf16_f32 v{b0+1}, v{b0+2}, v{b0+3}")
        for q in range(2): p.append(f"v_min_u32 v{b0+q}, -2, v{b0+q}")
        side.append((last_of[a], ["s_nop 1"] * 3 + p))
        p = []
        for q in range(4): p.append(f"v_mul_f32 v{b1+q}, s{sC1}, v{b1+q}")
        p.append(f"v_cvt_pk_bf16_f32 v{b0+2}, v{b1}, v{b1+1}")
        p.append(f"v_cvt_pk_bf16_f32 v{b0+3}, v{b1+2}, v{b1+3}")
        for q in range(2, 4): p.append(f"v_min_u32 v{b0+q}, -2, v{b0+q}")
        p.append(vm(f"buffer_store_dwordx4 v[{b0}:{b0+3}], v{VE}, {ws}, s{sSend+a} offen sc1", ("send", a)))
        side.append((last_of[a + 4], ["s_nop 1"] * 3 + p))
    def recv(a, k):
        r = VIN + 4 * a
        hq.append((k, vm(f"buffer_load_dwordx4 v[{r}:{r+3}], v{VE}, {ws}, s{sRecv+a} offen sc1", ("recv", a))))
    def check(al, tag):
        x, y = VT, VT + 1
        c = []
        if len(al) == 2:
            r0, r1 = VIN + 4 * al[0], VIN + 4 * al[1]
            c += [f"v_max3_u32 v{x}, v{r0+2}, v{r0+3}, v{r1+2}", f"v_max_u32 v{x}, v{x}, v{r1+3}",
                  f"v_cndmask_b32 v{x}, 0, v{x}, s[{sMask}:{sMask+1}]",
                  f"v_max3_u32 v{x}, v{x}, v{r0}, v{r0+1}", f"v_max3_u32 v{x}, v{x}, v{r1}, v{r1+1}"]
        else:
            r0 = VIN + 4 * al[0]
            c += [f"v_max_u32 v{x}, v{r0+2}, v{r0+3}", f"v_cndmask_b32 v{x}, 0, v{x}, s[{sMask}:{sMask+1}]",
                  f"v_max3_u32 v{x}, v{x}, v{r0}, v{r0+1}"]
        c.append(f"v_cmp_eq_u32 vcc, -1, v{x}")
        slowloop(tag, [f"buffer_load_dwordx4 v[{VIN+4*a}:{VIN+4*a+3}], v{VE}, {ws}, s{sRecv+a} offen sc1" for a in al], c,
                 256 if tag == "o" else 65536)
        return [wait([("recv", a) for a in al])] + c + [lambda: [f"s_cbranch_vccnz L_slow{tag}", f"L_back{tag}:"]]
    send(0); recv(0, o.kr[0])
    send(2); recv(2, o.kr[1])
    send(1); recv(1, o.kr[2])
    for a, kb in zip((0, 2, 1), o.kb):
        if kb > 0:
            hq.append((kb, vm(f"buffer_load_dwordx4 v[{VIN+4*a}:{VIN+4*a+3}], v{VE}, {ws}, s{sRecv+a} offen sc1", ("bak", a))))
    hq.sort(key=lambda x: x[0])
    TA, TB = VT + 8, VT + 16
    p = check([0, 2], "o")
    i0r, i2r, i1r = VIN, VIN + 8, VIN + 4
    for q in range(4):
        p += [f"v_lshlrev_b32 v{TA+2*q}, 16, v{i0r+q}", f"v_lshlrev_b32 v{TB+2*q}, 16, v{i2r+q}",
              f"v_and_b32 v{TA+2*q+1}, 0xffff0000, v{i0r+q}", f"v_and_b32 v{TB+2*q+1}, 0xffff0000, v{i2r+q}"]
    for q in range(8): p.append(f"v_add_f32 v{TA+q}, v{TA+q}, v{TB+q}")
    for q in range(8): p.append(f"v_exp_f32 v{TA+q}, v{TA+q}")
    for q in range(8): p.append(f"v_add_f32 v{TA+q}, 1.0, v{TA+q}")
    for q in range(8): p.append(f"v_rcp_f32 v{TA+q}, v{TA+q}")
    for q in range(8): p.append(f"v_fma_f32 v{TB+q}, v{TA+q}, -2.0, s{sA2}")
    for q in range(8): p.append(f"v_mul_f32 v{TA+q}, s{sA1}, v{TA+q}")
    side.append((o.kr[3], p))
    U = ACC + 16
    p = check([1], "s")
    for q in range(4):
        p += [f"v_lshlrev_b32 v{U+2*q}, 16, v{i1r+q}", f"v_and_b32 v{U+2*q+1}, 0xffff0000, v{i1r+q}"]
    side.append((o.kr[4], p))
    for h, r in enumerate(own):
        b = ACC + 4 * r
        u = U + 4 * h
        p = []
        for q in range(4): p.append(f"v_fma_f32 v{b+q}, v{b+q}, s{sC1}, v{u+q}")
        for q in range(4): p.append(f"v_exp_f32 v{b+q}, v{b+q}")
        for q in range(4): p.append(f"v_add_f32 v{b+q}, 1.0, v{b+q}")
        for q in range(4): p.append(f"v_rcp_f32 v{b+q}, v{b+q}")
        for q in range(4): p.append(f"v_fma_f32 v{b+q}, v{b+q}, v{TB+4*h+q}, v{TA+4*h+q}")
        p.append(f"v_cvt_pk_bf16_f32 v{b}, v{b}, v{b+1}")
        p.append(f"v_cvt_pk_bf16_f32 v{b+1}, v{b+2}, v{b+3}")
        p.append(vm(f"buffer_store_dwordx2 v[{b}:{b+1}], v{VO+h}, s[{SO}:{SO+3}], 0 offen {o.oflags}", ("out", h)))
        side.append((max(last_of[r] + 3, o.kr[4]), p))
    side.append((o.kcheck - 8, [lambda: [f"s_cmp_lg_u32 s{sSig}, 0", f"s_cselect_b32 s{sT2}, 0x2000000, s{sRec}"]]))
    side.append((o.keupd, [vm(f"buffer_store_dword v{VEP}, v{VFL}, {ws}, s{sT2} offen {o.eflags}", "Eupd")]))
    side.sort(key=lambda x: x[0])
    sq = []
    for k, p in side:
        for it in p: sq.append((k, it))
    def cost(t):
        if t.endswith(":"): return 0
        return 2 if (t.split()[0] in TRANS or t == "s_nop 1") else 1

    dgaps = sorted(g for g, tag in excl.items() if tag[0] == "dma")
    A(dma_txt(excl[dgaps[0]][1])[0])
    m0_for = dgaps[0]
    rt = 0
    while rt < len(reads) and pos[rt] < 0:
        emit_read(rt, max(0, rt - 2)); rt += 1
    info = []
    def needs_wait(kk):
        iss = [ii for ii, l in enumerate(lq) if l[0] in use[kk]]
        return max(iss) > state["lg_done"]
    def all_issued(kk):
        return all(sum(1 for l in lq if l[0] == key) == (2 if key[0] == "w" else 1) for key in use[kk])
    for k in range(NM):
        c, i, r = M[k]
        wk, xk = use[k]
        lg_wait((wk, xk), k)
        acc = f"v[{ACC+4*r}:{ACC+4*r+3}]"
        A(f"v_mfma_f32_16x16x32_bf16 {acc}, {inst[wk]['reg']}, {inst[xk]['reg']}, {'0' if k == first_of[r] else acc}")
        used = 0
        if k in excl:
            tag = excl[k]
            if tag[0] == "dma":
                d = tag[1]
                assert d == dmas[di] and dma_ok(d), (k, d)
                tx = dma_txt(d)
                if m0_for != k: A(tx[0])
                A(tx[1]); vmq.append(d[:2]); di += 1
                dgaps.pop(0)
                info.append(f"{d[0]}{d[1]}@{k}")
            elif tag[0] == "bar":
                emit_pub(tag[1])
            else:
                for x in fixed[tag](): A(x)
            assert not (rt < len(reads) and pos[rt] <= k)
        else:
            while rt < len(reads) and pos[rt] <= k:
                used += emit_read(rt, k); rt += 1
            kk = k + 1
            keys = ()
            while kk < NM:
                if all_issued(kk) and needs_wait(kk): keys += use[kk]
                if kk not in excl: break
                kk += 1
            barw = k + 1 in excl and excl[k + 1][0] == "bar"
            if keys or barw: used += 1
            while used < 2:
                if dgaps and m0_for != dgaps[0]:
                    A(dma_txt(excl[dgaps[0]][1])[0]); m0_for = dgaps[0]; used += 1
                    continue
                if hq and hq[0][0] <= k and state.get("flagok"):
                    if used: break
                    for x in hq.pop(0)[1](): A(x)
                    used = 2
                    continue
                if sq and sq[0][0] <= k:
                    it = sq[0][1]
                    if isinstance(it, str) and cost(it) + used > 2: break
                    if not isinstance(it, str) and used and (sq[0][0] < 0 or getattr(it, "vm", False)): break
                    sq.pop(0)
                    for x in ([it] if isinstance(it, str) else it()):
                        A(x); used += cost(x)
                    if getattr(it, "vm", False): used = 2
                    continue
                break
            w = vm_wait_txt(pub_at[excl[k + 1][1]]) if barw else []
            if keys:
                n = lg_wait(keys, k + 1, False)
                w = [(w[0] + " " if w else "s_waitcnt ") + f"lgkmcnt({n})"]
            for x in w: A(x)
        if o.stamps and k in o.stat: stamp()
    assert di == len(dmas) and rt == len(reads), (di, len(dmas), rt)
    A(f"; tail: {len(sq)} side instructions left")
    if o.verbose:
        print("dma issue:", " ".join(info), file=sys.stderr)
        print("publish:", " ".join(f"{bpos[t]}:{g[0][1]}-{max(x[1] for x in g if x[0]=='w')}{'+x' if any(x[0]=='x' for x in g) else ''}" for t, g in sorted(pub_at.items())), file=sys.stderr)
        print("pair_done", pair_done, "tail", len(sq), file=sys.stderr)
    while hq:
        for x in hq.pop(0)[1](): A(x)
    while sq:
        it = sq.pop(0)[1]
        for x in ([it] if isinstance(it, str) else it()): A(x)
    if o.stamps and o.diag:
        stamp()
        A("s_waitcnt vmcnt(0)")
        stamp()
    elif o.stamps:
        stamp()
        A("s_waitcnt vmcnt(0)")
        stamp()
        A("s_memrealtime s[98:99]")
        A("s_waitcnt lgkmcnt(0)")
        A("s_lshl_b32 s3, s2, 2")
        A(f"s_add_u32 s3, s3, s{sWave}")
        A("s_lshl_b32 s3, s3, 7")
        A("s_add_u32 s3, s3, 0x1000000")
        A("v_mov_b32 v30, s3")
        assert STAMP + 2 * nst[0] <= 94
        for b in range(1, nst[0]):
            A(f"s_sub_u32 s3, s{STAMP+2*b}, s{STAMP}")
            A("v_mov_b32 v31, s3")
            A(f"buffer_store_dword v31, v30, {ws}, 0 offen offset:{4*b}")
        A(f"s_getreg_b32 s3, hwreg(HW_REG_XCC_ID)")
        A(f"v_mov_b32 v31, s3")
        A(f"buffer_store_dword v31, v30, {ws}, 0 offen offset:{4*28}")
        A(f"v_mov_b32 v31, {nst[0] + 256*o.rt}")
        A(f"buffer_store_dword v31, v30, {ws}, 0 offen offset:0")
        A(f"v_mov_b32 v31, s43")
        A(f"buffer_store_dword v31, v30, {ws}, 0 offen offset:{4*29}")
        A("v_mov_b32 v31, s96")
        A(f"buffer_store_dword v31, v30, {ws}, 0 offen offset:{4*30}")
        A("v_mov_b32 v31, s98")
        A(f"buffer_store_dword v31, v30, {ws}, 0 offen offset:{4*31}")
    if o.diag:
        A("s_waitcnt vmcnt(0) lgkmcnt(0)")
        A("s_mov_b32 s3, 0")
        d = o.diag.split(":")
        if d[0] == "xcc":
            A("s_getreg_b32 s3, hwreg(HW_REG_XCC_ID)")
            A("s_sub_u32 s3, s3, s2")
            A("s_and_b32 s3, s3, 7")
            A("s_mul_i32 s3, s3, 500")
        if d[0] == "enc":
            A(f"s_sub_u32 s3, s{STAMP+2*int(d[2])}, s{STAMP+2*int(d[1])}")
            A(f"s_mul_i32 s3, s3, {d[3]}")
            A("s_min_u32 s3, s3, 20000")
            if len(d) > 4:
                A(f"s_cmp_eq_u32 s2, {d[4]}")
                A("s_cselect_b32 s3, s3, 0")
        A("s_add_u32 s3, s3, 4000")
        A("L_spin:")
        A("s_memrealtime s[4:5]")
        A("s_waitcnt lgkmcnt(0)")
        A("s_sub_u32 s6, s4, s94")
        A("s_cmp_lt_u32 s6, s3")
        A("s_cbranch_scc1 L_spin")
    A("L_end:")
    A("s_endpgm")
    L.extend(slow)
    if o.abl:
        first = next(i for i, l in enumerate(L) if l.startswith("v_mfma"))
        end = next(i for i, l in enumerate(L) if l.startswith("; tail"))
        K = []
        for i, l in enumerate(L):
            if first < i < end:
                if "b" in o.abl and l == "s_barrier": continue
                if "d" in o.abl and l.endswith(" lds"): continue
                if "w" in o.abl and l.startswith("s_waitcnt vmcnt"):
                    l = re.sub(r"vmcnt\(\d+\)", "", l)
                    if l.strip() == "s_waitcnt": continue
                if "l" in o.abl and l.startswith("s_waitcnt lgkmcnt"): continue
                if "r" in o.abl and l.startswith("ds_read"): continue
                if "x" in o.abl and (" sc1" in l or l.startswith("s_cbranch")): continue
                if "v" in o.abl and l.startswith("v_") and not l.startswith("v_mfma") and not l.startswith("v_cmp"): continue
            if "x" in o.abl and i >= end and l.startswith("s_cbranch_vccnz L_slows") : continue
            K.append(l)
        L = K
    return fix_hazards(L), NV, RING0 + NR * 4096

def build(o):
    body, nv, lds = gen_main(KNAME, o)
    txt = HDR + f"; @launch grid=(256,1,1) block=(256,1,1) lds={lds}\n"
    txt += '.amdgcn_target "amdgcn-amd-amdhsa--gfx950"\n.text\n' + "\n".join(body) + "\n"
    if o.codepf:
        txt += ".fill 64, 4, 0xbf810000\n"
    txt += f""".section .rodata,"a"
.p2align 6
.amdhsa_kernel {KNAME}
  .amdhsa_next_free_vgpr {nv}
  .amdhsa_next_free_sgpr 102
  .amdhsa_accum_offset 256
  .amdhsa_group_segment_fixed_size 0
  .amdhsa_kernarg_size 40
  .amdhsa_user_sgpr_count 2
  .amdhsa_user_sgpr_kernarg_segment_ptr 1
  .amdhsa_system_sgpr_workgroup_id_x 1
.end_amdhsa_kernel
"""
    return txt

def opts(argv=None):
    p = argparse.ArgumentParser()
    il = lambda s: [int(x) for x in s.split(",")]
    p.add_argument("-o", default="/dev/stdout")
    p.add_argument("--NR", type=int, default=30)
    p.add_argument("--nd", type=int, default=30)
    p.add_argument("--keep", type=int, default=2)
    p.add_argument("--nacc", type=int, default=64)
    p.add_argument("--groups", type=lambda s: [il(x) for x in s.split("/")], default="1,1,1,2,2,3,5/5,5,5/7,8/15")
    p.add_argument("--pub", type=il, default="1,1,1,2,2,3,5,5,5,5,5,5,5,5,5,5")
    p.add_argument("--margin", type=int, default=7)
    p.add_argument("--lat", type=int, default=5)
    p.add_argument("--NP", type=int, default=11)
    p.add_argument("--pace", type=float, default=4.5)
    p.add_argument("--x1at", type=int, default=18)
    p.add_argument("--x1step", type=int, default=2)
    p.add_argument("--pfs", default="-994:w0,-1:w123")
    p.add_argument("--d0", type=float, default=2)
    p.add_argument("--pace0", type=float, default=4.5)
    p.add_argument("--n0", type=int, default=0)
    p.add_argument("--pause", type=float, default=0)
    p.add_argument("--kb", type=il, default="0,0,0")
    p.add_argument("--depth", type=int, default=3)
    p.add_argument("--nap", type=int, default=2)
    p.add_argument("--keupd", type=int, default=10**6)
    p.add_argument("--eflags", default="")
    p.add_argument("--pz", type=int, default=5)
    p.add_argument("--kpoison", type=int, default=0)
    p.add_argument("--kflag", type=int, default=330)
    p.add_argument("--kpoll", type=int, default=362)
    p.add_argument("--kcheck", type=int, default=395)
    p.add_argument("--kr", type=il, default="399,429,455,453,479")
    p.add_argument("--NPa", type=int, default=7)
    p.add_argument("--midn", type=int, default=5)
    p.add_argument("--latepro", type=int, default=1)
    p.add_argument("--spin", type=int, default=200000)
    p.add_argument("--xflags", default="")
    p.add_argument("--wflags", default="")
    p.add_argument("--pfflags", default="")
    p.add_argument("--oflags", default="")
    p.add_argument("--stamps", type=int, default=0)
    p.add_argument("--rt", type=int, default=0)
    p.add_argument("--stat", type=il, default="119,239,359,419,479")
    p.add_argument("--align", type=int, default=1)
    p.add_argument("--verbose", type=int, default=0)
    p.add_argument("--abl", default="")
    p.add_argument("--map", type=int, default=2)
    p.add_argument("--codepf", type=int, default=-1)
    p.add_argument("--diag", default="")
    return p.parse_args(argv)

def code_lines(txt):
    import subprocess, tempfile, os
    d = tempfile.mkdtemp()
    open(d + "/a.s", "w").write(txt)
    subprocess.run(["clang", "-x", "assembler", "-target", "amdgcn-amd-amdhsa", "-mcpu=gfx950", "-c", d + "/a.s", "-o", d + "/a.o"], check=True)
    dis = subprocess.run(["llvm-objdump", "-d", "--mcpu=gfx950", d + "/a.o"], capture_output=True, text=True).stdout
    addr = lambda l: int(l.split("//")[1].split(":")[0], 16)
    ls = [l for l in dis.splitlines() if "//" in l]
    pc = next(addr(l) for l in ls if "s_getpc" in l) + 4
    end = max(addr(l) for l in ls if "s_branch L_back" in l) + 4
    return (end - pc) // 128 + 2

if __name__ == "__main__":
    o = opts()
    if o.codepf < 0:
        o.codepf = 100
        v, o.verbose = o.verbose, 0
        o.codepf = code_lines(build(o))
        o.verbose = v
    open(o.o, "w").write(build(o))
```

```python
import sys, argparse, re

KNAME = "standalone__autoregressive_conv_wavernn__speech_kernel"
HDR = """; Kernarg layout for this problem (40 bytes, ptrs only, base s[0:1]):
"""
XPART, XCLS, XWV = 20480, 2304, 5120
RING0 = 2 * XPART
OOB = 0x7ffffff0
EPC = 0x9e3779b1

def regs_of(tok):
    m = re.fullmatch(r"([va])\[(\d+):(\d+)\]", tok)
    if m:
        return {(m.group(1), i) for i in range(int(m.group(2)), int(m.group(3)) + 1)}
    m = re.fullmatch(r"-?([va])(\d+)", tok)
    if m:
        return {(m.group(1), int(m.group(2)))}
    return set()

TRANS = ("v_exp_f32", "v_rcp_f32")
def fix_hazards(lines):
    out = []
    hist = []
    def dist_needed(pred, need):
        d = 0
        for h in reversed(hist):
            if d >= need:
                return 0
            if pred(h):
                return need - d
            d += h["w"]
        return 0
    for ln in lines:
        s = ln.split(";")[0].strip()
        if not s or s.endswith(":") or s.startswith("."):
            out.append(ln)
            continue
        mn, *rest = s.split(None, 1)
        ops = [t.strip() for t in rest[0].split(",")] if rest else []
        ops = [t.split()[0] if t else t for t in ops]
        h = dict(mn=mn, w=1, wr=set(), rd=set(), mf=False, valu=False, c=set(), swr=set(), store=False)
        if mn == "s_nop":
            h["w"] = int(ops[0]) + 1
        isv = mn.startswith("v_")
        if mn.startswith("v_mfma"):
            h["mf"] = True
            h["wr"] = regs_of(ops[0]); h["rd"] = regs_of(ops[1]) | regs_of(ops[2]); h["c"] = regs_of(ops[3])
        elif isv:
            h["valu"] = True
            if mn.startswith("v_cmp") or mn.startswith("v_readfirstlane"):
                h["swr"] = {ops[0]}
                for t in ops[1:]: h["rd"] |= regs_of(t)
            else:
                h["wr"] = regs_of(ops[0])
                for t in ops[1:]: h["rd"] |= regs_of(t)
                if "_co_" in mn: h["swr"] = {"vcc"}
        elif mn.startswith("buffer_store") or mn.startswith("ds_write"):
            for t in ops: h["rd"] |= regs_of(t)
            h["store"] = mn.endswith("x4") or mn.endswith("x3")
            h["data"] = regs_of(ops[0])
        elif mn.startswith("buffer_load") or mn.startswith("global_load"):
            if s.endswith(" lds"):
                h["rd"] = regs_of(ops[0])
            else:
                h["wr"] = regs_of(ops[0]); h["rd"] = regs_of(ops[1])
        elif mn.startswith("ds_read"):
            h["wr"] = regs_of(ops[0]); h["rd"] = regs_of(ops[1])
        n = 0
        touch = h["wr"] | h["rd"]
        if h["mf"]:
            n = max(n, dist_needed(lambda p: p["valu"] and p["wr"] & (h["rd"] | h["c"]), 2))
            n = max(n, dist_needed(lambda p: p["mf"] and p["wr"] & h["rd"], 8))
            n = max(n, dist_needed(lambda p: p["mf"] and (p["wr"] & h["c"]) and p["wr"] != h["c"], 6))
        elif touch:
            n = max(n, dist_needed(lambda p: p["mf"] and p["wr"] & touch, 8))
        if h["valu"]:
            n = max(n, dist_needed(lambda p: p["mf"] and p["c"] & h["wr"], 3))
            n = max(n, dist_needed(lambda p: p["store"] and p["data"] & h["wr"], 2))
            if mn not in TRANS:
                n = max(n, dist_needed(lambda p: p["mn"] in TRANS and p["wr"] & h["rd"], 1))
            if mn.startswith("v_readfirstlane"):
                n = max(n, dist_needed(lambda p: p["valu"] and p["wr"] & h["rd"], 1))
            sread = {t for t in ops[1:] if re.fullmatch(r"s\d+|vcc|s\[\d+:\d+\]", t)}
            n = max(n, dist_needed(lambda p: p["valu"] and p["swr"] & sread, 2))
        elif h["wr"]:
            n = max(n, dist_needed(lambda p: p["store"] and p["data"] & h["wr"], 1))
        if mn.startswith("buffer_") and s.endswith(" lds"):
            n = max(n, dist_needed(lambda p: p["mn"].startswith("s_") and p.get("m0"), 1))
        if mn.startswith("s_") and ops and ops[0] == "m0":
            h["m0"] = True
        if n:
            out.append(f"s_nop {n-1}")
            hist.append(dict(mn="s_nop", w=n, wr=set(), rd=set(), mf=False, valu=False, c=set(), swr=set(), store=False))
        out.append(ln)
        hist.append(h)
        hist = hist[-24:]
    return out

def pack(lines):
    out, i = [], 0
    while i < len(lines):
        a = lines[i].replace(",", "").split()
        b = lines[i + 1].replace(",", "").split() if i + 1 < len(lines) else []
        if a[0] in ("v_add_f32", "v_mul_f32", "v_fma_f32") and b and a[0] == b[0]:
            ops, hi, ok = [], [], True
            for x, y in zip(a[1:], b[1:]):
                if re.fullmatch(r"v\d+", x) and y == f"v{int(x[1:])+1}" and int(x[1:]) % 2 == 0:
                    ops.append(f"v[{x[1:]}:{y[1:]}]"); hi.append(1)
                elif x == y and re.fullmatch(r"s\d+", x) and int(x[1:]) % 2 == 0:
                    ops.append(f"s[{x[1:]}:{int(x[1:])+1}]"); hi.append(0)
                elif x == y and x in ("1.0", "-2.0"):
                    ops.append(x); hi.append(0)
                else:
                    ok = False
            if ok:
                sel = "" if all(hi) else " op_sel_hi:[" + ",".join(map(str, hi[1:])) + "]"
                out.append(f"v_pk_{a[0][2:]} " + ", ".join(ops) + sel)
                i += 2
                continue
        out.append(lines[i]); i += 1
    return out

def gen_main(name, o):
    L = []
    A = L.append
    NR = o.NR
    ACC = 0
    VA = 32
    VB = 38
    VXS = 40
    VWS = 45
    VO = 49
    VE = 51
    VFL = 52
    VFP = 53
    VEP = 54
    VFV = 55
    VPF = 80
    VPD = 57
    LANE = 58
    VIN = 60
    VT = 72
    VPOOL = 96
    nvp = (256 - VPOOL) // 4
    pool = [f"v[{VPOOL+4*i}:{VPOOL+4*i+3}]" for i in range(nvp)] + [f"a[{4*i}:{4*i+3}]" for i in range(o.nacc)]
    NV = 256 + 4 * o.nacc
    SX, SW, SO, SWS = 8, 12, 16, 20
    sWave, sSig, sXb, sXl, sT, sT2 = 24, 25, 26, 27, 28, 29
    sSend, sRecv = 30, 33
    sRec = 36
    sC1, sA1, sA2, sBad = 4, 6, 38, 40
    sMask = 44
    sSpin = 46
    sP1 = 47
    sTap = 48
    STAMP = 64
    nst = [0]
    def stamp_txt():
        if not o.stamps: return []
        r = STAMP + 2 * nst[0]; nst[0] += 1
        return [f"{'s_memrealtime' if o.rt else 's_memtime'} s[{r}:{r+1}]"]
    def stamp():
        for t in stamp_txt(): A(t)

    own = [3, 7]
    M = []
    nd = o.nd
    for c in range(3):
        i0 = 0
        for T in o.groups[c]:
            for r in range(8):
                for i in range(i0, i0 + T):
                    if r in own and 15 * c + i >= nd: continue
                    M.append((c, i, r))
            i0 += T
        assert i0 == 15
    assert nd <= 45
    pair_done = {}
    i0 = 0
    for T in o.groups[3][:-1]:
        for r in [0, 4, 2, 6, 1, 5]:
            for i in range(i0, i0 + T):
                M.append((3, i, r))
        i0 += T
    for a in (0, 2, 1):
        for r in (a, a + 4):
            for i in range(i0, 15):
                M.append((3, i, r))
        pair_done[a] = len(M) - 1
    ph2 = len(M)
    dchunks = [c for c in (3, 2, 1, 0) if 15 * c + 14 >= nd]
    if len(dchunks) > 2 and nd % 15:
        dchunks[-1], dchunks[-2] = dchunks[-2], dchunks[-1]
    for c in dchunks:
        for r in own:
            for i in range(15):
                if 15 * c + i >= nd: M.append((c, i, r))
    NM = len(M)
    assert NM == 480 and len(set(M)) == 480
    last_of = {r: max(k for k, m in enumerate(M) if m[2] == r) for r in range(8)}
    first_of = {r: min(k for k, m in enumerate(M) if m[2] == r) for r in range(8)}

    inst = {}
    use = []
    for k, (c, i, r) in enumerate(M):
        wk = ("w", 15 * c + i)
        xk = ("x", c, r + i, 1 if (k >= ph2 and c < 4 - o.keep) else 0)
        for key in (wk, xk):
            d = inst.setdefault(key, dict(first=k, last=k))
            d["last"] = k
        use.append((wk, xk))
    order = sorted(inst, key=lambda key: (inst[key]["first"], key[0] == "w"))
    reads = []
    for key in order:
        reads += [(key, 0)] if key[0] == "x" else [(key, 0), (key, 1)]
    pubs = []
    n0 = 0
    for T in o.pub:
        pubs.append([("w", n) for n in range(n0, n0 + T)])
        n0 += T
    assert n0 == 60
    pubs[0].append(("x", 0))
    src_of = lambda key: ("w", key[1]) if key[0] == "w" else ("x", key[1] >> 1)
    first_read = {}
    last_read = {}
    for t, (key, half) in enumerate(reads):
        first_read.setdefault(src_of(key), t)
        last_read[src_of(key)] = t
    tpub = [min(first_read[d] for d in g) for g in pubs]
    gi = max(i for i, t in enumerate(tpub) if t <= first_read[("x", 1)])
    pubs[gi].append(("x", 1))
    pub_at = {tpub[i]: pubs[i] for i in range(len(pubs))}
    dmas = [("x", 0, z) for z in range(5)]
    for n in range(60):
        dmas.append(("w", n))
        if o.x1at <= n < o.x1at + 5 * o.x1step and (n - o.x1at) % o.x1step == 0:
            dmas.append(("x", 1, (n - o.x1at) // o.x1step))
    excl = {}
    def reserve(k, tag):
        while k in excl: k += 1
        excl[k] = tag
        return k
    for it in (o.pfs.split(",") if o.pfs else []):
        p_, kind = it.split(":")
        if int(p_) >= 0: reserve(int(p_), ("pf", kind))
    kk = o.d0
    nd_ = 0
    for d in dmas[o.NP:]:
        g = int(kk + 0.5)
        while g in excl or g - 1 in excl: g += 1
        excl[g] = ("dma", d)
        nd_ += 1
        kk += o.pace0 if nd_ < o.n0 else o.pace
        if nd_ == o.n0: kk += o.pause
    klast = g
    kp = o.kpoison if o.kpoison > 0 else klast + 2
    reserve(kp, "E")
    for a in range(3): reserve(kp + 2 + o.pz * a, ("poison", a))
    reserve(o.kflag, "flag"); reserve(o.kpoll, "poll"); reserve(o.kpoll2, "poll2")
    if o.touch: reserve(kp + 1, "touch")
    pos = [0] * len(reads)
    bpos = {}
    nxt = NM
    for t in range(len(reads) - 1, -1, -1):
        p = min(inst[reads[t][0]]["first"] - o.margin, nxt - 1, o.rcap)
        while p in excl: p -= 1
        pos[t] = p
        nxt = p
        if t in pub_at:
            p -= 1
            while p in excl or p - 1 in excl: p -= 1
            bpos[t] = p
            nxt = p
    prev = -1
    for t in range(len(reads)):
        if inst[reads[t][0]]["first"] < 8 and t < 10:
            pos[t] = -1
            continue
        if t in pub_at:
            p = max(bpos[t], prev + 1)
            while p in excl: p += 1
            bpos[t] = prev = p
        p = max(pos[t], prev + 1)
        while p in excl: p += 1
        pos[t] = prev = p
        assert pos[t] < inst[reads[t][0]]["first"], (t, reads[t], pos[t])
    for t in pub_at:
        if pos[t] >= 0: excl[bpos[t]] = ("bar", t)
    free = [(-10**9, s) for s in pool]
    for t, (key, half) in enumerate(reads):
        if half == 0:
            free.sort()
            assert free[0][0] + 1 <= pos[t], ("out of fragment registers", key, pos[t], free[0])
            _, s = free.pop(0)
            inst[key]["reg"] = s
            free.append((inst[key]["last"], s))

    vmq, lq = [], []
    state = dict(vm_done=-1, lg_done=-1, bar_lg=-1)
    def vm_wait_txt(labels):
        if o.nohs: labels = [l for l in labels if not (l in ("E", "flag", "poll", "poll2") or l[0] == "poison")]
        if not labels: return []
        idx = max(i for i, l in enumerate(vmq) if l in labels)
        for l in labels: assert vmq.count(l) == (5 if l[0] == "x" else 1), l
        if idx <= state["vm_done"]: return []
        state["vm_done"] = idx
        n = len(vmq) - 1 - idx
        assert n <= 63
        return [f"s_waitcnt vmcnt({n})"]
    published = set()
    def emit_pub(t, lg=None):
        n = 1
        w = vm_wait_txt(pub_at[t])
        if lg is not None:
            w = [(w[0] + " " if w else "s_waitcnt ") + f"lgkmcnt({lg})"]
        for x in w: A(x); n += 1
        A("s_barrier")
        state["bar_lg"] = state["lg_done"]
        published.add(t)
        if t == 0: stamp()
        return n
    def emit_read(t, gap):
        key, half = reads[t]
        n = 0
        if t in pub_at and t not in published:
            n += emit_pub(t)
        reg = inst[key]["reg"]
        if key[0] == "x":
            _, c, j, _ = key
            va = VA + 2 * (j >> 3) + (c & 1)
            A(f"ds_read_b128 {reg}, v{va} offset:{(c >> 1)*XPART + (j & 3)*XWV + ((j >> 2) & 1)*XCLS}")
        else:
            slot = key[1] % NR
            m = re.fullmatch(r"([va])\[(\d+):\d+\]", reg)
            b = int(m.group(2)) + 2 * half
            A(f"ds_read_b64_tr_b16 {m.group(1)}[{b}:{b+1}], v{VB + (slot >= 15)} offset:{(slot % 15)*4096 + half*512}")
        lq.append((key, gap))
        return n + 1
    def lg_wait(keys, k, emit=True):
        idx = max(i for i, l in enumerate(lq) if l[0] in keys)
        if idx <= state["lg_done"]: return 0 if emit else None
        old = [i for i, l in enumerate(lq) if l[1] <= k - o.lat]
        if old: idx = max(idx, old[-1])
        n = len(lq) - 1 - idx
        if n > 15:
            n = 15; idx = len(lq) - 1 - 15
        state["lg_done"] = idx
        if not emit: return n
        A(f"s_waitcnt lgkmcnt({n})")
        return 1
    def dma_txt(d):
        if d[0] == "x":
            _, p, z = d
            so = "0" if p == 0 else f"s{sP1}"
            return [f"s_add_u32 m0, s{sXb}, {p*XPART + z*1024}",
                    f"buffer_load_dwordx4 v{VXS+z}, s[{SX}:{SX+3}], {so} offen {o.xflags} lds"]
        c, i = divmod(d[1], 15)
        so = "0" if i == 0 else f"s{sTap+i}"
        return [f"s_add_u32 m0, s{sXl}, {RING0 + (d[1] % NR)*4096}",
                f"buffer_load_dwordx4 v{VWS+c}, s[{SW}:{SW+3}], {so} offen {o.wflags} lds"]
    def dma_ok(d):
        if d[0] == "w" and d[1] >= NR:
            t = last_read[("w", d[1] - NR)]
            return t < len(lq) and t <= state["bar_lg"]
        return True
    pfl = []
    for it in (o.pfs.split(",") if o.pfs else []):
        p_, kind = it.split(":")
        pfl.append((int(p_), kind))
    def pf_txt(kind):
        vmq.append(("pf", kind))
        r = VPF + [k_ for _, k_ in pfl].index(kind)
        srd = SX if kind == "x" else SW
        return [f"buffer_load_dword v{VPD}, v{r}, s[{srd}:{srd+3}], 0 offen {o.pfflags}"]

    t0, t1, t2, t3, t4, t5 = VT, VT + 1, VT + 2, VT + 3, VT + 4, VT + 5
    if o.map == 0:
        bKh, bTau, bMt, bPar, bBat = 2, 3, 4, 6, 7
    elif o.map == 1:
        bKh, bTau, bMt, bPar, bBat = 4, 3, 5, 7, 2
    else:
        bKh, bTau, bMt, bPar, bBat = 1, 0, 4, 6, 7
    sKh, sJ, sU, sBat, sSl, sX0 = 38, 40, 42, 63, 48, 46
    A(f".globl {name}")
    if o.align: A(".p2align 12")
    A(".p2align 8")
    A(f".type {name},@function")
    A(f"{name}:")
    stamp()
    if o.stamps: A("s_memrealtime s[96:97]")
    if o.diag: A("s_memrealtime s[94:95]")
    A("s_load_dwordx4 s[4:7], s[0:1], 0")
    A(f"s_load_dwordx2 s[{SO}:{SO+1}], s[0:1], 16")
    A(f"s_load_dwordx2 s[{SWS}:{SWS+1}], s[0:1], 32")
    A("s_cmp_ge_u32 s2, 256")
    A("s_cbranch_scc1 L_end")
    if o.bx: A(f"s_xor_b32 s2, s2, {o.bx}")
    A(f"v_lshrrev_b32 v{t5}, 6, v0")
    A(f"v_and_b32 v{LANE}, 63, v0")
    A(f"v_readfirstlane_b32 s{sWave}, v{t5}")
    if o.codepf:
        A("s_getpc_b64 s[30:31]")
        A(f"v_min_u32 v{t0}, {o.codepf - 1}, v0")
        A(f"v_lshlrev_b32 v{t0}, 7, v{t0}")
        A(f"v_mov_b32 v{t1}, s31")
        A(f"v_add_co_u32 v{t0}, vcc, s30, v{t0}")
        A(f"s_bfe_u32 s{sKh}, s2, {0x10000 + bKh}")
        A(f"s_bfe_u32 s61, s2, {0x10000 + bTau}")
        A(f"v_addc_co_u32 v{t1}, vcc, 0, v{t1}, vcc")
        A(f"global_load_dword v{VPD}, v[{t0}:{t1}], off")
        vmq.append("code")
    else:
        A(f"s_bfe_u32 s{sKh}, s2, {0x10000 + bKh}")
        A(f"s_bfe_u32 s61, s2, {0x10000 + bTau}")
    A(f"s_lshl1_add_u32 s{sSig}, s{sKh}, s61")
    A(f"s_bfe_u32 s{sU}, s2, {0x20000 + bMt}")
    A(f"s_mul_i32 s{sU}, s{sU}, 125")
    A(f"s_sub_u32 s{sU}, s{sU}, s{sSig}")
    A(f"s_bfe_u32 s3, s2, {0x10000 + bPar}")
    A(f"s_lshl1_add_u32 s{sU}, s{sU}, s3")
    A(f"s_lshl_b32 s{sU}, s{sU}, 9")
    A(f"s_bfe_u32 s{sBat}, s2, {0x10000 + bBat}")
    A(f"s_mul_i32 s{sBat}, s{sBat}, 512000")
    A(f"s_lshl_b32 s{sXl}, s{sWave}, 10")
    A(f"s_lshl_b32 s3, s{sKh}, 8")
    A(f"s_add_u32 s3, s3, s{sU}")
    A(f"s_add_u32 s3, s3, s{sXl}")
    A(f"s_sub_u32 s{sX0}, s3, 14336")
    A(f"v_lshrrev_b32 v{t0}, 3, v{LANE}")
    A(f"v_and_b32 v{t4}, 7, v0")
    A(f"v_and_b32 v{t1}, 6, v{t0}")
    A(f"v_xor_b32 v{t1}, v{t1}, v{t4}")
    A(f"v_lshl_add_u32 v{t1}, v{t1}, 4, s{sX0}")
    A(f"v_lshl_add_u32 v{VXS}, v{t0}, 13, v{t1}")
    A(f"v_add_u32 v{t2}, 6, v{t0}")
    A(f"v_and_b32 v{t1}, 6, v{t2}")
    A(f"v_xor_b32 v{t1}, v{t1}, v{t4}")
    A(f"s_add_u32 s3, s{sX0}, 4096")
    A(f"v_lshl_add_u32 v{t1}, v{t1}, 4, s3")
    A(f"v_lshl_add_u32 v{VXS+3}, v{t2}, 13, v{t1}")
    A(f"v_cmp_gt_u32 vcc, 2, v{t0}")
    A(f"v_add_u32 v{t1}, 0x20000, v{VXS}")
    A(f"v_add_u32 v{t2}, 0xffff0000, v{VXS+3}")
    A(f"v_cndmask_b32 v{VXS+2}, v{t2}, v{t1}, vcc")
    A(f"v_add_u32 v{VXS+1}, 0x10000, v{VXS}")
    A(f"s_mul_i32 s{sXb}, s{sWave}, {XWV}")
    A(f"s_lshl_b32 s{sSl}, s{sKh}, 8")
    A(f"s_add_u32 s{sSl}, s{sSl}, s61")
    if o.map == 3:
        A("s_bfe_u32 s3, s2, 0x10002")
        A(f"s_bfe_u32 s{sJ}, s2, 0x10003")
        A(f"s_lshl1_add_u32 s{sJ}, s3, s{sJ}")
    else:
        A(f"s_and_b32 s{sJ}, s2, 3" if o.map != 2 else f"s_bfe_u32 s{sJ}, s2, 0x20002")
    A(f"s_lshl2_add_u32 s{sSl}, s{sSl}, s{sJ}")
    A(f"s_lshl_b32 s{sSl}, s{sSl}, 7")
    A(f"s_lshl_b32 s3, s{sWave}, 13")
    A(f"s_add_u32 s{sSl}, s{sSl}, s3")
    A(f"s_and_b32 s3, s{sWave}, 1")
    A("s_lshl_b32 s3, s3, 2")
    A(f"v_and_or_b32 v{t1}, v{t0}, 2, s3")
    A(f"v_xor_b32 v{t1}, v{t1}, v{t4}")
    A(f"v_lshl_add_u32 v{t1}, v{t1}, 4, s{sSl}")
    A(f"v_lshl_add_u32 v{VWS}, v{t0}, 10, v{t1}")
    A(f"s_mov_b32 s{SX+2}, 512000")
    A(f"s_mov_b32 s{SX+3}, 0x20000")
    A(f"s_mov_b32 s{SW+2}, 3932160")
    A(f"s_mov_b32 s{SW+3}, 0x20000")
    A("s_waitcnt lgkmcnt(0)")
    stamp()
    A(f"s_add_u32 s{SX}, s4, s{sBat}")
    A(f"s_addc_u32 s{SX+1}, s5, 0")
    A(f"s_mov_b32 s{SW}, s6")
    A(f"s_mov_b32 s{SW+1}, s7")
    mid = []
    B = mid.append
    B(f"v_cmp_gt_u32 vcc, 4, v{t0}")
    B(f"v_add_u32 v{VXS+4}, 0x10000, v{VXS+3}")
    B(f"v_mov_b32 v{t5}, {OOB}")
    B(f"v_cndmask_b32 v{VXS+4}, v{t5}, v{VXS+4}, vcc")
    assert o.map != 1 and len(pfl) <= 4
    for n_, (p_, kind) in enumerate(pfl):
        r = VPF + n_
        if kind[0] == "w":
            c0, nc = int(kind[1]), len(kind) - 1
            if n_ == 0:
                B(f"s_lshr_b32 s{sT}, s2, {bMt}")
                B(f"s_lshl_b32 s{sT}, s{sT}, 18")
                B(f"s_add_u32 s{sT}, s{sT}, s{sSl}")
                if o.pfpair:
                    B(f"s_bfe_u32 s{sT2}, s2, 0x10003")
                    B(f"s_mul_i32 s{sT2}, s{sT2}, {4096 - 128}")
                    B(f"s_add_u32 s{sT}, s{sT}, s{sT2}")
                    B(f"v_and_b32 v{t3}, 1, v{t4}")
                    B(f"v_lshl_add_u32 v{t3}, v{t3}, 7, s{sT}")
                    B(f"v_lshrrev_b32 v{t2}, 1, v{t4}")
                    B(f"v_lshl_add_u32 v{t3}, v{t2}, 10, v{t3}")
                else:
                    B(f"v_lshl_add_u32 v{t3}, v{t4}, 10, s{sT}")
                B(f"v_lshl_add_u32 v{t3}, v{t0}, 15, v{t3}")
            B(f"v_cmp_gt_u32 vcc, {nc}, v{t0}")
            B(f"v_add_u32 v{r}, {c0*32768}, v{t3}")
            B(f"s_nop 0")
            B(f"v_cndmask_b32 v{r}, v{t5}, v{r}, vcc")
        else:
            B(f"s_bfe_u32 s{sT2}, s2, {0x10000 + (3 if o.map >= 2 else bTau)}")
            B(f"s_lshl_b32 s{sT2}, s{sT2}, 12")
            B(f"s_add_u32 s{sT2}, s{sT2}, s{sX0}")
            B(f"v_cmp_gt_u32 vcc, 18, v{LANE}")
            B(f"v_lshl_add_u32 v{r}, v{LANE}, 13, s{sT2}")
            B(f"v_add_u32 v{r}, 128, v{r}")
            B(f"v_cndmask_b32 v{r}, v{t5}, v{r}, vcc")
    npfmid = len(mid)
    for i in range(1, 15): B(f"s_mov_b32 s{sTap+i}, {i*262144}")
    B(f"v_and_b32 v{t0}, 15, v{LANE}")
    B(f"v_lshrrev_b32 v{t1}, 4, v{LANE}")
    for d in range(3):
        if d: B(f"v_add_u32 v{t2}, {d}, v{t0}")
        md = t2 if d else t0
        B(f"v_and_b32 v{t3}, 6, v{md}")
        B(f"v_xor_b32 v{t3}, v{t3}, v{t1}")
        B(f"v_lshlrev_b32 v{t3}, 4, v{t3}")
        B(f"v_lshl_add_u32 v{VA+2*d}, v{md}, 7, v{t3}")
    B(f"v_lshrrev_b32 v{t2}, 2, v{t0}")
    B(f"v_lshl_add_u32 v{t2}, v{t1}, 3, v{t2}")
    B(f"v_bfe_u32 v{t3}, v{LANE}, 3, 2")
    B(f"v_xor_b32 v{t3}, s{sWave}, v{t3}")
    B(f"v_lshlrev_b32 v{t3}, 5, v{t3}")
    B(f"v_lshl_add_u32 v{t3}, v{t2}, 7, v{t3}")
    B(f"v_and_b32 v{t2}, 3, v{LANE}")
    B(f"v_lshl_add_u32 v{t3}, v{t2}, 3, v{t3}")
    B(f"v_add_u32 v{VB}, {RING0}, v{t3}")
    B(f"v_add_u32 v{VB+1}, {RING0 + 15*4096}, v{t3}")
    for d in range(3): B(f"v_xor_b32 v{VA+2*d+1}, 64, v{VA+2*d}")
    for c in range(1, 4): B(f"v_add_u32 v{VWS+c}, {c*32768}, v{VWS}")
    B(f"s_movk_i32 s{sP1}, 128")
    late = []
    B = late.append
    B([f"s_add_u32 s{SO}, s{SO}, s{sBat}", f"s_addc_u32 s{SO+1}, s{SO+1}, 0"])
    B(f"s_mov_b32 s{SO+2}, 512000")
    B(f"s_mov_b32 s{SO+3}, 0x20000")
    B(f"s_mov_b32 s{SWS+2}, 0x2000000")
    B(f"s_mov_b32 s{SWS+3}, 0x20000")
    B(f"s_lshr_b32 s3, s2, {bMt}")
    if o.map != 1:
        B(f"s_lshl2_add_u32 s3, s3, s{sJ}")
    else:
        B("s_and_b32 s4, s2, 7")
        B("s_lshl3_add_u32 s3, s3, s4")
    B(f"s_lshl2_add_u32 s4, s3, s{sWave}")
    B("s_mul_i32 s4, s4, 640")
    B(f"s_add_u32 s{sRec}, s4, {(3 << 20) + 4096}")
    B("s_lshl_b32 s3, s3, 14")
    B(f"s_add_u32 s3, s3, s{sXl}")
    B(f"s_lshl_b32 s5, s{sSig}, 12")
    B("s_add_u32 s5, s5, s3")
    for a in range(3):
        B(f"s_sub_u32 s4, s{sSig}, {a+1}")
        B("s_and_b32 s4, s4, 3")
        B("s_lshl_b32 s4, s4, 12")
        B(f"s_add_u32 s{sSend+a}, s4, s3")
        B([f"s_cmp_le_u32 s{sSig}, {2-a}", "s_cselect_b32 s4, 8, 0"])
        B(f"s_add_u32 s{sRecv+a}, s5, s4")
        if a < 2:
            B("s_add_u32 s3, s3, 0x100000")
            B("s_add_u32 s5, s5, 0x100000")
    B(f"v_lshlrev_b32 v{VE}, 4, v{LANE}")
    for q in range(4): B(f"v_mov_b32 v{VIN+q}, -1")
    B(f"v_mov_b32 v{VEP}, 0")
    B(f"v_mov_b32 v{t3}, {OOB}")
    B(f"s_lshl_b32 s4, s{sSig}, 7")
    B(f"v_add_u32 v{t2}, s4, v{VE}")
    B(f"v_cmp_gt_u32 vcc, 8, v{LANE}")
    B(f"v_and_b32 v{VFP}, 3, v{LANE}")
    B(f"v_lshlrev_b32 v{VFP}, 7, v{VFP}")
    B(f"v_cndmask_b32 v{VFL}, v{t3}, v{t2}, vcc")
    B(f"v_mov_b32 v{VEP+1}, 0")
    B(f"v_mov_b32 v{VEP+2}, 0")
    B(f"s_lshl2_add_u32 s3, s{sJ}, s{sWave}")
    B("s_lshl_b32 s3, s3, 5")
    B(f"s_add_u32 s3, s3, s{sU}")
    B("s_add_u32 s3, s3, 3072")
    B(f"v_lshl_add_u32 v{t2}, v{t1}, 3, s3")
    B(f"v_lshl_add_u32 v{VO}, v{t0}, 13, v{t2}")
    B([f"s_cmp_eq_u32 s{sSig}, 3", "s_cselect_b32 s3, 16, 15"])
    B([f"s_cmp_eq_u32 s{sSig}, 3", f"s_cselect_b32 s{sMask+1}, -1, 0x7fffffff"])
    B(f"v_cmp_gt_u32 vcc, s3, v{t0}")
    B(f"v_add_u32 v{VO+1}, 4096, v{VO}")
    B(f"s_mov_b32 s{sMask}, -1")
    B(f"v_cndmask_b32 v{VO+1}, v{t3}, v{VO+1}, vcc")
    B(f"s_mov_b32 s3, 0x4038aa3b")
    B([f"s_bitcmp1_b32 s{sSig}, 0", f"s_cselect_b32 s{sC1}, 0xbfb8aa3b, s3"])
    B([f"s_bitcmp1_b32 s{sSig}, 0", f"s_cselect_b32 s{sA1}, 0, 1.0"])
    B([f"s_bitcmp1_b32 s{sSig}, 0", f"s_cselect_b32 s{sA2}, 1.0, 0"])
    if o.stamps: B("s_mov_b32 s43, 0")
    di = 0
    pfq = list(pfl)
    nmid0 = len(mid)
    if o.pfonly:
        for x in mid[:npfmid]: A(x)
        for _, kind in pfl:
            for x in pf_txt(kind): A(x)
        A("s_waitcnt vmcnt(0)")
        A("s_endpgm")
    while di < o.NP:
        while pfq and pfq[0][0] <= di - 1000:
            while nmid0 - len(mid) < npfmid: A(mid.pop(0))
            for x in pf_txt(pfq.pop(0)[1]): A(x)
        tx = dma_txt(dmas[di])
        if dmas[di][0] == "w" and dmas[di][1] > 0:
            while nmid0 - len(mid) < npfmid + dmas[di][1]: A(mid.pop(0))
        A(tx[0])
        if mid: A(mid.pop(0))
        A(tx[1])
        vmq.append(dmas[di][:2]); di += 1
        if di in o.pstat: stamp()
        for _ in range(o.midn if di < o.NPa else len(mid)):
            if mid: A(mid.pop(0))
        if di == o.NPa and o.latepro:
            for it in late:
                for x in ([it] if isinstance(it, str) else it): A(x)
            late = []
        if di == o.itat and o.itouch:
            A("s_mov_b64 exec, 0")
            A("s_branch L_touch0")
            A("L_touched:")
            A("s_mov_b64 exec, -1")
    assert not mid
    while pfq and pfq[0][0] < 0:
        for x in pf_txt(pfq.pop(0)[1]): A(x)

    side = []
    hq = []
    slow = []
    def vm(txt, label):
        def f():
            if o.nohs and (label in ("E", "flag", "poll", "poll2") or label[0] == "poison"): return []
            vmq.append(label); return [txt]
        f.vm = True
        return f
    def wait(labels):
        return lambda: vm_wait_txt(labels)
    ws = f"s[{SWS}:{SWS+3}]"
    side.append((-1, [it if isinstance(it, str) else (lambda it=it: it) for it in late]))
    fixed = {}
    fixed["E"] = vm(f"buffer_load_dword v{VEP}, v{VEP}, {ws}, s{sRec} offen sc1", "E")
    for a in range(3):
        fixed[("poison", a)] = vm(f"buffer_store_dwordx4 v[{VIN}:{VIN+3}], v{VE}, {ws}, s{sSend+a} offen sc1", ("poison", a))
    side.append((o.kflag - 12, [wait(["E"]), f"v_add_u32 v{VEP}, {0 if o.nohs else EPC}, v{VEP}", lambda: state.update(ep=1) or []]))
    def flag():
        assert state.get("ep")
        return vm_wait_txt([("poison", 2)]) + vm(f"buffer_store_dwordx4 v[{VEP}:{VEP+3}], v{VFL}, {ws}, s{sRec} offen offset:128 sc1", "flag")()
    fixed["flag"] = flag
    fixed["poll"] = vm(f"buffer_load_dword v{VFV}, v{VFP}, {ws}, s{sRec} offen offset:128 sc1", "poll")
    for _, kind in pfq: fixed[("pf", kind)] = (lambda kind=kind: pf_txt(kind))
    ld_flag = lambda r: f"buffer_load_dword v{r}, v{VFP}, {ws}, s{sRec} offen offset:128 sc1"
    ld_in = lambda a: f"buffer_load_dwordx4 v[{VIN+4*a}:{VIN+4*a+3}], v{VE}, {ws}, s{sRecv+a} offen sc1"
    fixed["poll2"] = vm(ld_flag(VFV + 1), "poll2")
    fixed["touch"] = vm(f"buffer_load_dword v{VPD}, v{VO}, s[{SO}:{SO+3}], 0 offen", "touch")
    spin = lambda inc: ([f"s_add_u32 s43, s43, {inc}"] if o.stamps else []) + [
        f"s_add_u32 s{sSpin}, s{sSpin}, 1", f"s_cmp_gt_u32 s{sSpin}, {o.spin}", "s_cbranch_scc1 L_end"]
    side.append((o.kcheck, [f"s_mov_b32 s{sSpin}, 0", wait(["poll"]),
                            lambda: state.update(flagok=1) or [f"v_cmp_ne_u32 s[{sBad}:{sBad+1}], v{VFV}, v{VEP}"]]))
    def send(a):
        b0, b1 = ACC + 4 * a, ACC + 4 * (a + 4)
        p = []
        for q in range(4): p.append(f"v_mul_f32 v{b0+q}, s{sC1}, v{b0+q}")
        p.append(f"v_cvt_pk_bf16_f32 v{b0}, v{b0}, v{b0+1}")
        p.append(f"v_cvt_pk_bf16_f32 v{b0+1}, v{b0+2}, v{b0+3}")
        for q in range(2): p.append(f"v_min_u32 v{b0+q}, -2, v{b0+q}")
        side.append((last_of[a], ["s_nop 1"] * 3 + p))
        p = []
        for q in range(4): p.append(f"v_mul_f32 v{b1+q}, s{sC1}, v{b1+q}")
        p.append(f"v_cvt_pk_bf16_f32 v{b0+2}, v{b1}, v{b1+1}")
        p.append(f"v_cvt_pk_bf16_f32 v{b0+3}, v{b1+2}, v{b1+3}")
        for q in range(2, 4): p.append(f"v_min_u32 v{b0+q}, -2, v{b0+q}")
        p.append(vm(f"buffer_store_dwordx4 v[{b0}:{b0+3}], v{VE}, {ws}, s{sSend+a} offen sc1", ("send", a)))
        side.append((last_of[a + 4], ["s_nop 1"] * 3 + p))
    def recv(a, k):
        hq.append((k, vm(ld_in(a), ("recv", a))))
    def chk(a, x, prev=None):
        r0 = VIN + 4 * a
        c = [f"v_max_u32 v{x+1}, v{r0+2}, v{r0+3}", f"v_cndmask_b32 v{x+1}, 0, v{x+1}, s[{sMask}:{sMask+1}]"]
        if prev is None:
            return c + [f"v_max3_u32 v{x}, v{x+1}, v{r0}, v{r0+1}"]
        return c + [f"v_max3_u32 v{x+1}, v{x+1}, v{r0}, v{r0+1}", f"v_max_u32 v{x}, v{x}, v{x+1}"]
    send(0); recv(0, o.kr[0])
    send(2); recv(2, o.kr[1])
    send(1); recv(1, o.kr[2])
    kb = [k_ for k_ in o.kb if k_ > 0]
    for n_, k_ in enumerate(kb): hq.append((k_, vm(ld_in(1), ("bak", n_))))
    hq.sort(key=lambda x: x[0])
    TA, TB, X = VT + 8, VT + 16, VT
    unpack = lambda a, d: [t for q in range(4) for t in
                           (f"v_lshlrev_b32 v{d+2*q}, 16, v{VIN+4*a+q}", f"v_and_b32 v{d+2*q+1}, 0xffff0000, v{VIN+4*a+q}")]
    other = unpack(2, TB)
    for q in range(8): other.append(f"v_add_f32 v{TA+q}, v{TA+q}, v{TB+q}")
    for q in range(8): other.append(f"v_exp_f32 v{TA+q}, v{TA+q}")
    for q in range(8): other.append(f"v_add_f32 v{TA+q}, 1.0, v{TA+q}")
    for q in range(8): other.append(f"v_rcp_f32 v{TA+q}, v{TA+q}")
    for q in range(8): other.append(f"v_fma_f32 v{TB+q}, v{TA+q}, -2.0, s{sA2}")
    for q in range(8): other.append(f"v_mul_f32 v{TA+q}, s{sA1}, v{TA+q}")
    side.append((o.kr[3], [wait([("recv", 0)])] + chk(0, X) + unpack(0, TA)))
    side.append((o.kr[4], [wait([("recv", 2), "poll2"])] + chk(2, X, X) + [f"v_cmp_eq_u32 vcc, -1, v{X}",
                 lambda: state.update(ochk=1, nhq=len(hq)) or [f"s_or_b64 s[{sBad}:{sBad+1}], s[{sBad}:{sBad+1}], vcc", "s_cbranch_scc1 L_again", "L_backo:"]] + other))
    slow += ["L_again:", f"v_cmp_ne_u32 vcc, v{VFV+1}, v{VEP}", "s_cbranch_vccz L_again1", ld_flag(VFV + 1)] + spin(1) + [
             "s_waitcnt vmcnt(0)", "s_branch L_again", "L_again1:", ld_in(0), ld_in(2), ld_in(1), "s_branch L_backo"]
    nlate = sum(1 for k_ in kb + [o.kr[2]] if k_ > o.kr[4] + 4)
    po = pack(unpack(0, TA) + other)
    slow += ["L_rec:", f"s_waitcnt vmcnt({1 + nlate})", "L_rec2:"] + chk(0, X) + chk(2, X, X) + [
             f"v_cmp_eq_u32 vcc, -1, v{X}", "s_cbranch_vccnz L_rec1", ld_in(1)] + po + ["s_waitcnt vmcnt(1)", "s_branch L_slows2" if kb else "s_branch L_slows3"]
    slow += ["L_rec1:", ld_in(0), ld_in(2)] + spin(256) + ["s_waitcnt vmcnt(0)", "s_branch L_rec2"]
    if not kb:
        slow += ["L_slows3:"] + chk(1, X) + [f"v_cmp_eq_u32 vcc, -1, v{X}", "s_cbranch_vccz L_backs", "s_waitcnt vmcnt(0)", "s_branch L_slows2"]
    slow += ["L_slows:", ld_in(1)] + spin(65536) + [f"s_waitcnt vmcnt({len(kb)})", "L_slows2:"] + chk(1, X) + [
             f"v_cmp_eq_u32 vcc, -1, v{X}", "s_cbranch_vccnz L_slows", "s_branch L_backs"]
    U = ACC + 16
    fin = [wait([("recv", 1)])] + chk(1, X) + [f"v_cmp_eq_u32 vcc, -1, v{X}", lambda: ["s_cbranch_vccnz L_slows", "L_backs:"]] + unpack(1, U)
    regs = [(ACC + 4 * r + q, 4 * h + q) for h, r in enumerate(own) for q in range(4)]
    for b, e in regs: fin.append(f"v_fma_f32 v{b}, v{b}, s{sC1}, v{U+e}")
    for b, e in regs: fin.append(f"v_exp_f32 v{b}, v{b}")
    for b, e in regs: fin.append(f"v_add_f32 v{b}, 1.0, v{b}")
    for h, r in enumerate(own):
        b = ACC + 4 * r
        for q in range(4): fin.append(f"v_rcp_f32 v{b+q}, v{b+q}")
        for q in range(4): fin.append(f"v_fma_f32 v{b+q}, v{b+q}, v{TB+4*h+q}, v{TA+4*h+q}")
        fin.append(f"v_cvt_pk_bf16_f32 v{b}, v{b}, v{b+1}")
        fin.append(f"v_cvt_pk_bf16_f32 v{b+1}, v{b+2}, v{b+3}")
        fin.append(vm(f"buffer_store_dwordx2 v[{b}:{b+1}], v{VO+h}, s[{SO}:{SO+3}], 0 offen {o.oflags}", ("out", h)))
    side.append((10**5, fin))
    side.append((o.kcheck - 8, [lambda: [f"s_cmp_lg_u32 s{sSig}, 0", f"s_cselect_b32 s{sT2}, 0x2000000, s{sRec}"]]))
    side.append((o.keupd, [vm(f"buffer_store_dword v{VEP}, v{VFL}, {ws}, s{sT2} offen {o.eflags}", "Eupd")]))
    side.sort(key=lambda x: x[0])
    sq = []
    for k, p in side:
        for it in p: sq.append((k, it))
    def cost(t):
        if t.endswith(":"): return 0
        return 2 if (t.split()[0] in TRANS or t == "s_nop 1") else 1

    dgaps = sorted(g for g, tag in excl.items() if tag[0] == "dma")
    A(dma_txt(excl[dgaps[0]][1])[0])
    m0_for = dgaps[0]
    rt = 0
    while rt < len(reads) and pos[rt] < 0:
        emit_read(rt, max(0, rt - 2)); rt += 1
    info = []
    def needs_wait(kk):
        iss = [ii for ii, l in enumerate(lq) if l[0] in use[kk]]
        return max(iss) > state["lg_done"]
    def all_issued(kk):
        return all(sum(1 for l in lq if l[0] == key) == (2 if key[0] == "w" else 1) for key in use[kk])
    for k in range(NM):
        c, i, r = M[k]
        wk, xk = use[k]
        lg_wait((wk, xk), k)
        acc = f"v[{ACC+4*r}:{ACC+4*r+3}]"
        A(f"v_mfma_f32_16x16x32_bf16 {acc}, {inst[wk]['reg']}, {inst[xk]['reg']}, {'0' if k == first_of[r] else acc}")
        used = 0
        if k in excl:
            tag = excl[k]
            if tag[0] == "dma":
                d = tag[1]
                assert d == dmas[di] and dma_ok(d), (k, d)
                tx = dma_txt(d)
                if m0_for != k: A(tx[0])
                A(tx[1]); vmq.append(d[:2]); di += 1
                dgaps.pop(0)
                info.append(f"{d[0]}{d[1]}@{k}")
            elif tag[0] == "bar":
                emit_pub(tag[1])
            else:
                for x in fixed[tag](): A(x)
            assert not (rt < len(reads) and pos[rt] <= k)
        else:
            while rt < len(reads) and pos[rt] <= k:
                used += emit_read(rt, k); rt += 1
            kk = k + 1
            keys = ()
            while kk < NM:
                if all_issued(kk) and needs_wait(kk): keys += use[kk]
                if kk not in excl: break
                kk += 1
            barw = k + 1 in excl and excl[k + 1][0] == "bar"
            if keys or barw: used += 1
            while used < 2:
                if dgaps and m0_for != dgaps[0]:
                    A(dma_txt(excl[dgaps[0]][1])[0]); m0_for = dgaps[0]; used += 1
                    continue
                if hq and hq[0][0] <= k and state.get("flagok"):
                    if used: break
                    for x in hq.pop(0)[1](): A(x)
                    used = 2
                    continue
                if sq and sq[0][0] <= k:
                    it = sq[0][1]
                    if isinstance(it, str) and cost(it) + used > 2: break
                    if not isinstance(it, str) and used and (sq[0][0] < 0 or getattr(it, "vm", False)): break
                    sq.pop(0)
                    for x in ([it] if isinstance(it, str) else it()):
                        A(x); used += cost(x)
                    if getattr(it, "vm", False): used = 2
                    continue
                break
            w = vm_wait_txt(pub_at[excl[k + 1][1]]) if barw else []
            if keys:
                n = lg_wait(keys, k + 1, False)
                w = [(w[0] + " " if w else "s_waitcnt ") + f"lgkmcnt({n})"]
            for x in w: A(x)
        if o.stamps and k in o.stat: stamp()
    assert di == len(dmas) and rt == len(reads), (di, len(dmas), rt)
    A(f"; tail: {len(sq)} side instructions left")
    if o.verbose:
        print("dma issue:", " ".join(info), file=sys.stderr)
        print("publish:", " ".join(f"{bpos[t]}:{g[0][1]}-{max(x[1] for x in g if x[0]=='w')}{'+x' if any(x[0]=='x' for x in g) else ''}" for t, g in sorted(pub_at.items())), file=sys.stderr)
        print("pair_done", pair_done, "tail", len(sq), file=sys.stderr)
    assert not hq and state.get("ochk") and state["nhq"] == nlate, (state, nlate)
    A(f"s_cmp_lg_u64 s[{sBad}:{sBad+1}], 0")
    A("s_cbranch_scc1 L_rec")
    tl = []
    while sq:
        it = sq.pop(0)[1]
        tl += [it] if isinstance(it, str) else it()
    for x in pack(tl): A(x)
    if o.stamps and o.diag:
        stamp()
        A("s_waitcnt vmcnt(0)")
        stamp()
    elif o.stamps:
        stamp()
        A("s_waitcnt vmcnt(0)")
        stamp()
        A("s_memrealtime s[98:99]")
        A("s_waitcnt lgkmcnt(0)")
        A("s_lshl_b32 s3, s2, 2")
        A(f"s_add_u32 s3, s3, s{sWave}")
        A("s_lshl_b32 s3, s3, 7")
        A("s_add_u32 s3, s3, 0x1000000")
        A("v_mov_b32 v30, s3")
        assert STAMP + 2 * nst[0] <= 94
        for b in range(1, nst[0]):
            A(f"s_sub_u32 s3, s{STAMP+2*b}, s{STAMP}")
            A("v_mov_b32 v31, s3")
            A(f"buffer_store_dword v31, v30, {ws}, 0 offen offset:{4*b}")
        A(f"s_getreg_b32 s3, hwreg(HW_REG_XCC_ID)")
        A(f"v_mov_b32 v31, s3")
        A(f"buffer_store_dword v31, v30, {ws}, 0 offen offset:{4*28}")
        A(f"v_mov_b32 v31, {nst[0] + 256*o.rt}")
        A(f"buffer_store_dword v31, v30, {ws}, 0 offen offset:0")
        A(f"v_mov_b32 v31, s43")
        A(f"buffer_store_dword v31, v30, {ws}, 0 offen offset:{4*29}")
        A("v_mov_b32 v31, s96")
        A(f"buffer_store_dword v31, v30, {ws}, 0 offen offset:{4*30}")
        A("v_mov_b32 v31, s98")
        A(f"buffer_store_dword v31, v30, {ws}, 0 offen offset:{4*31}")
    if o.diag:
        A("s_waitcnt vmcnt(0) lgkmcnt(0)")
        A("s_mov_b32 s3, 0")
        d = o.diag.split(":")
        if d[0] == "xcc":
            A("s_getreg_b32 s3, hwreg(HW_REG_XCC_ID)")
            A("s_sub_u32 s3, s3, s2")
            A("s_and_b32 s3, s3, 7")
            A("s_mul_i32 s3, s3, 500")
        if d[0] == "enc":
            A(f"s_sub_u32 s3, s{STAMP+2*int(d[2])}, s{STAMP+2*int(d[1])}")
            A(f"s_mul_i32 s3, s3, {d[3]}")
            A("s_min_u32 s3, s3, 20000")
            if len(d) > 4:
                A(f"s_cmp_eq_u32 s2, {d[4]}")
                A("s_cselect_b32 s3, s3, 0")
        A("s_add_u32 s3, s3, 4000")
        A("L_spin:")
        A("s_memrealtime s[4:5]")
        A("s_waitcnt lgkmcnt(0)")
        A("s_sub_u32 s6, s4, s94")
        A("s_cmp_lt_u32 s6, s3")
        A("s_cbranch_scc1 L_spin")
    A("L_end:")
    A("s_endpgm")
    L.extend(slow)
    if o.abl:
        first = next(i for i, l in enumerate(L) if l.startswith("v_mfma"))
        end = next(i for i, l in enumerate(L) if l.startswith("; tail"))
        K = []
        for i, l in enumerate(L):
            if first < i < end:
                if "b" in o.abl and l == "s_barrier": continue
                if "d" in o.abl and l.endswith(" lds"): continue
                if "w" in o.abl and l.startswith("s_waitcnt vmcnt"):
                    l = re.sub(r"vmcnt\(\d+\)", "", l)
                    if l.strip() == "s_waitcnt": continue
                if "l" in o.abl and l.startswith("s_waitcnt lgkmcnt"): continue
                if "r" in o.abl and l.startswith("ds_read"): continue
                if "x" in o.abl and (" sc1" in l or l.startswith("s_cbranch")): continue
                if "v" in o.abl and l.startswith("v_") and not l.startswith("v_mfma") and not l.startswith("v_cmp"): continue
            if "x" in o.abl and i >= end and (l.startswith("s_cbranch_vccnz L_slows") or l.startswith("s_cbranch_scc1 L_rec")): continue
            K.append(l)
        L = K
    return fix_hazards(L), NV, RING0 + NR * 4096

def disasm(lines):
    import subprocess, tempfile
    d = tempfile.mkdtemp()
    open(d + "/a.s", "w").write('.amdgcn_target "amdgcn-amd-amdhsa--gfx950"\n.text\n' + "\n".join(lines) + "\n")
    subprocess.run(["clang", "-x", "assembler", "-target", "amdgcn-amd-amdhsa", "-mcpu=gfx950", "-c", d + "/a.s", "-o", d + "/a.o"], check=True)
    dis = subprocess.run(["llvm-objdump", "-d", "--mcpu=gfx950", d + "/a.o"], capture_output=True, text=True).stdout
    return [int(l.split("//")[1].split(":")[0], 16) for l in dis.splitlines() if "//" in l]

def add_touches(body, entry_off=0x300):
    isins = lambda l: l.split(";")[0].strip() and not l.strip().endswith(":") and not l.startswith(".")
    n = 0
    while True:
        ad = disasm(body + [f"L_touch{n}:"])
        idx = [i for i, l in enumerate(body) if isins(l)]
        assert len(idx) == len(ad)
        page = 4096 * (n + 1) - entry_off
        if ad[-1] < page: break
        cand = [(i, a) for i, a in zip(idx, ad) if page <= a <= page + 56]
        best = None
        for i, a in cand:
            if body[i].startswith("v_mfma"):
                j, cnt = i - 1, 0
                while not body[j].startswith("v_mfma"):
                    cnt += 2 if (body[j].startswith("buffer") or body[j] == "s_barrier" or body[j].split()[0] in TRANS or body[j] == "s_nop 1") else 1
                    j -= 1
                if best is None or cnt < best[0]: best = (cnt, i)
        i = best[1]
        body = body[:i] + [f"L_touch{n}:", f"s_cbranch_execz L_touch{n+1}"] + body[i:]
        n += 1
    return [l.replace(f"L_touch{n}", "L_touched") for l in body]

def build(o):
    body, nv, lds = gen_main(KNAME, o)
    if o.itouch: body = add_touches(body)
    txt = HDR + f"; @launch grid=(256,1,1) block=(256,1,1) lds={lds}\n"
    txt += '.amdgcn_target "amdgcn-amd-amdhsa--gfx950"\n.text\n' + "\n".join(body) + "\n"
    if o.codepf:
        txt += ".fill 64, 4, 0xbf810000\n"
    txt += f""".section .rodata,"a"
.p2align 6
.amdhsa_kernel {KNAME}
  .amdhsa_next_free_vgpr {nv}
  .amdhsa_next_free_sgpr 102
  .amdhsa_accum_offset 256
  .amdhsa_group_segment_fixed_size 0
  .amdhsa_kernarg_size 40
  .amdhsa_user_sgpr_count 2
  .amdhsa_user_sgpr_kernarg_segment_ptr 1
  .amdhsa_system_sgpr_workgroup_id_x 1
.end_amdhsa_kernel
"""
    return txt

def opts(argv=None):
    p = argparse.ArgumentParser()
    il = lambda s: [int(x) for x in s.split(",")]
    p.add_argument("-o", default="/dev/stdout")
    p.add_argument("--NR", type=int, default=30)
    p.add_argument("--nd", type=int, default=30)
    p.add_argument("--keep", type=int, default=2)
    p.add_argument("--nacc", type=int, default=64)
    p.add_argument("--groups", type=lambda s: [il(x) for x in s.split("/")], default="1,1,1,2,2,3,5/5,5,5/7,8/15")
    p.add_argument("--pub", type=il, default="1,1,1,2,2,3,5,5,5,5,5,5,5,5,5,5")
    p.add_argument("--margin", type=int, default=7)
    p.add_argument("--lat", type=int, default=5)
    p.add_argument("--NP", type=int, default=11)
    p.add_argument("--pace", type=float, default=4.5)
    p.add_argument("--x1at", type=int, default=18)
    p.add_argument("--x1step", type=int, default=2)
    p.add_argument("--pfs", default="-994:w0,-1:w123")
    p.add_argument("--d0", type=float, default=2)
    p.add_argument("--pace0", type=float, default=4.5)
    p.add_argument("--n0", type=int, default=0)
    p.add_argument("--pause", type=float, default=0)
    p.add_argument("--kb", type=il, default="0,0,0")
    p.add_argument("--depth", type=int, default=3)
    p.add_argument("--nap", type=int, default=2)
    p.add_argument("--keupd", type=int, default=10**6)
    p.add_argument("--eflags", default="")
    p.add_argument("--pfpair", type=int, default=0)
    p.add_argument("--bx", type=int, default=0)
    p.add_argument("--pfonly", type=int, default=0)
    p.add_argument("--nohs", type=int, default=0)
    p.add_argument("--pstat", type=il, default="99")
    p.add_argument("--pz", type=int, default=5)
    p.add_argument("--kpoison", type=int, default=0)
    p.add_argument("--kflag", type=int, default=330)
    p.add_argument("--kpoll", type=int, default=362)
    p.add_argument("--kcheck", type=int, default=395)
    p.add_argument("--kr", type=il, default="392,418,448,432,458")
    p.add_argument("--kpoll2", type=int, default=420)
    p.add_argument("--touch", type=int, default=0)
    p.add_argument("--itouch", type=int, default=0)
    p.add_argument("--itat", type=int, default=9)
    p.add_argument("--rcap", type=int, default=480)
    p.add_argument("--NPa", type=int, default=7)
    p.add_argument("--midn", type=int, default=5)
    p.add_argument("--latepro", type=int, default=1)
    p.add_argument("--spin", type=int, default=200000)
    p.add_argument("--xflags", default="")
    p.add_argument("--wflags", default="")
    p.add_argument("--pfflags", default="")
    p.add_argument("--oflags", default="")
    p.add_argument("--stamps", type=int, default=0)
    p.add_argument("--rt", type=int, default=0)
    p.add_argument("--stat", type=il, default="119,239,359,419,479")
    p.add_argument("--align", type=int, default=1)
    p.add_argument("--verbose", type=int, default=0)
    p.add_argument("--abl", default="")
    p.add_argument("--map", type=int, default=2)
    p.add_argument("--codepf", type=int, default=-1)
    p.add_argument("--diag", default="")
    return p.parse_args(argv)

def code_lines(txt):
    import subprocess, tempfile, os
    d = tempfile.mkdtemp()
    open(d + "/a.s", "w").write(txt)
    subprocess.run(["clang", "-x", "assembler", "-target", "amdgcn-amd-amdhsa", "-mcpu=gfx950", "-c", d + "/a.s", "-o", d + "/a.o"], check=True)
    dis = subprocess.run(["llvm-objdump", "-d", "--mcpu=gfx950", d + "/a.o"], capture_output=True, text=True).stdout
    addr = lambda l: int(l.split("//")[1].split(":")[0], 16)
    ls = [l for l in dis.splitlines() if "//" in l]
    pc = next(addr(l) for l in ls if "s_getpc" in l) + 4
    end = max(addr(l) for l in ls if "s_branch L_back" in l) + 4
    return (end - pc) // 128 + 2

if __name__ == "__main__":
    o = opts()
    if o.codepf < 0:
        o.codepf = 100
        v, o.verbose = o.verbose, 0
        o.codepf = code_lines(build(o))
        o.verbose = v
    open(o.o, "w").write(build(o))
```

```python
import sys, argparse, re

KNAME = "standalone__autoregressive_conv_wavernn__speech_kernel"
HDR = """; Kernarg layout for this problem (40 bytes, ptrs only, base s[0:1]):
"""
XPART, XCLS, XWV = 20480, 2304, 5120
RING0 = 2 * XPART
OOB = 0x7ffffff0
EPC = 0x9e3779b1

def regs_of(tok):
    m = re.fullmatch(r"([va])\[(\d+):(\d+)\]", tok)
    if m:
        return {(m.group(1), i) for i in range(int(m.group(2)), int(m.group(3)) + 1)}
    m = re.fullmatch(r"-?([va])(\d+)", tok)
    if m:
        return {(m.group(1), int(m.group(2)))}
    return set()

TRANS = ("v_exp_f32", "v_rcp_f32")
def fix_hazards(lines):
    out = []
    hist = []
    def dist_needed(pred, need):
        d = 0
        for h in reversed(hist):
            if d >= need:
                return 0
            if pred(h):
                return need - d
            d += h["w"]
        return 0
    for ln in lines:
        s = ln.split(";")[0].strip()
        if not s or s.endswith(":") or s.startswith("."):
            out.append(ln)
            continue
        mn, *rest = s.split(None, 1)
        ops = [t.strip() for t in rest[0].split(",")] if rest else []
        ops = [t.split()[0] if t else t for t in ops]
        h = dict(mn=mn, w=1, wr=set(), rd=set(), mf=False, valu=False, c=set(), swr=set(), store=False)
        if mn == "s_nop":
            h["w"] = int(ops[0]) + 1
        isv = mn.startswith("v_")
        if mn.startswith("v_mfma"):
            h["mf"] = True
            h["wr"] = regs_of(ops[0]); h["rd"] = regs_of(ops[1]) | regs_of(ops[2]); h["c"] = regs_of(ops[3])
        elif isv:
            h["valu"] = True
            if mn.startswith("v_cmp") or mn.startswith("v_readfirstlane"):
                h["swr"] = {ops[0]}
                for t in ops[1:]: h["rd"] |= regs_of(t)
            else:
                h["wr"] = regs_of(ops[0])
                for t in ops[1:]: h["rd"] |= regs_of(t)
                if "_co_" in mn: h["swr"] = {"vcc"}
        elif mn.startswith("buffer_store") or mn.startswith("ds_write"):
            for t in ops: h["rd"] |= regs_of(t)
            h["store"] = mn.endswith("x4") or mn.endswith("x3")
            h["data"] = regs_of(ops[0])
        elif mn.startswith("buffer_load") or mn.startswith("global_load"):
            if s.endswith(" lds"):
                h["rd"] = regs_of(ops[0])
            else:
                h["wr"] = regs_of(ops[0]); h["rd"] = regs_of(ops[1])
        elif mn.startswith("ds_read"):
            h["wr"] = regs_of(ops[0]); h["rd"] = regs_of(ops[1])
        n = 0
        touch = h["wr"] | h["rd"]
        if h["mf"]:
            n = max(n, dist_needed(lambda p: p["valu"] and p["wr"] & (h["rd"] | h["c"]), 2))
            n = max(n, dist_needed(lambda p: p["mf"] and p["wr"] & h["rd"], 8))
            n = max(n, dist_needed(lambda p: p["mf"] and (p["wr"] & h["c"]) and p["wr"] != h["c"], 6))
        elif touch:
            n = max(n, dist_needed(lambda p: p["mf"] and p["wr"] & touch, 8))
        if h["valu"]:
            n = max(n, dist_needed(lambda p: p["mf"] and p["c"] & h["wr"], 3))
            n = max(n, dist_needed(lambda p: p["store"] and p["data"] & h["wr"], 2))
            if mn not in TRANS:
                n = max(n, dist_needed(lambda p: p["mn"] in TRANS and p["wr"] & h["rd"], 1))
            if mn.startswith("v_readfirstlane"):
                n = max(n, dist_needed(lambda p: p["valu"] and p["wr"] & h["rd"], 1))
            sread = {t for t in ops[1:] if re.fullmatch(r"s\d+|vcc|s\[\d+:\d+\]", t)}
            n = max(n, dist_needed(lambda p: p["valu"] and p["swr"] & sread, 2))
        elif h["wr"]:
            n = max(n, dist_needed(lambda p: p["store"] and p["data"] & h["wr"], 1))
        if mn.startswith("buffer_") and s.endswith(" lds"):
            n = max(n, dist_needed(lambda p: p["mn"].startswith("s_") and p.get("m0"), 1))
        if mn.startswith("s_") and ops and ops[0] == "m0":
            h["m0"] = True
        if n:
            out.append(f"s_nop {n-1}")
            hist.append(dict(mn="s_nop", w=n, wr=set(), rd=set(), mf=False, valu=False, c=set(), swr=set(), store=False))
        out.append(ln)
        hist.append(h)
        hist = hist[-24:]
    return out

def pack(lines):
    out, i = [], 0
    while i < len(lines):
        a = lines[i].replace(",", "").split()
        b = lines[i + 1].replace(",", "").split() if i + 1 < len(lines) else []
        if a[0] in ("v_add_f32", "v_mul_f32", "v_fma_f32") and b and a[0] == b[0]:
            ops, hi, ok = [], [], True
            for x, y in zip(a[1:], b[1:]):
                if re.fullmatch(r"v\d+", x) and y == f"v{int(x[1:])+1}" and int(x[1:]) % 2 == 0:
                    ops.append(f"v[{x[1:]}:{y[1:]}]"); hi.append(1)
                elif x == y and re.fullmatch(r"s\d+", x) and int(x[1:]) % 2 == 0:
                    ops.append(f"s[{x[1:]}:{int(x[1:])+1}]"); hi.append(0)
                elif x == y and x in ("1.0", "-2.0"):
                    ops.append(x); hi.append(0)
                else:
                    ok = False
            if ok:
                sel = "" if all(hi) else " op_sel_hi:[" + ",".join(map(str, hi[1:])) + "]"
                out.append(f"v_pk_{a[0][2:]} " + ", ".join(ops) + sel)
                i += 2
                continue
        out.append(lines[i]); i += 1
    return out

def gen_main(name, o):
    L = []
    A = L.append
    NR = o.NR
    ACC = 0
    VA = 32
    VB = 38
    VXS = 40
    VWS = 45
    VO = 49
    VE = 51
    VFL = 52
    VFP = 53
    VEP = 54
    VFV = 55
    VPF = 80
    VPD = 57
    LANE = 58
    VIN = 60
    VT = 72
    VPOOL = 96
    nvp = (256 - VPOOL) // 4
    pool = [f"v[{VPOOL+4*i}:{VPOOL+4*i+3}]" for i in range(nvp)] + [f"a[{4*i}:{4*i+3}]" for i in range(o.nacc)]
    NV = 256 + 4 * o.nacc
    SX, SW, SO, SWS = 8, 12, 16, 20
    sWave, sSig, sXb, sXl, sT, sT2 = 24, 25, 26, 27, 28, 29
    sSend, sRecv = 30, 33
    sRec = 36
    sC1, sA1, sA2, sBad = 4, 6, 38, 40
    sMask = 44
    sSpin = 46
    sW3 = 37
    sP1 = 47
    sTap = 48
    STAMP = 64
    nst = [0]
    def stamp_txt():
        if not o.stamps: return []
        r = STAMP + 2 * nst[0]; nst[0] += 1
        return [f"{'s_memrealtime' if o.rt else 's_memtime'} s[{r}:{r+1}]"]
    def stamp():
        for t in stamp_txt(): A(t)

    own = [3, 7]
    M = []
    nd = o.nd
    for c in range(3):
        i0 = 0
        for T in o.groups[c]:
            for r in range(8):
                for i in range(i0, i0 + T):
                    if r in own and 15 * c + i >= nd: continue
                    M.append((c, i, r))
            i0 += T
        assert i0 == 15
    assert nd <= 45
    pair_done = {}
    i0 = 0
    for T in o.groups[3][:-1]:
        for r in [0, 4, 2, 6, 1, 5]:
            for i in range(i0, i0 + T):
                M.append((3, i, r))
        i0 += T
    for a in (0, 2, 1):
        for r in (a, a + 4):
            for i in range(i0, 15):
                M.append((3, i, r))
        pair_done[a] = len(M) - 1
    ph2 = len(M)
    dchunks = [c for c in (3, 2, 1, 0) if 15 * c + 14 >= nd]
    if len(dchunks) > 2 and nd % 15:
        dchunks[-1], dchunks[-2] = dchunks[-2], dchunks[-1]
    for c in dchunks:
        for r in own:
            for i in range(15):
                if 15 * c + i >= nd: M.append((c, i, r))
    NM = len(M)
    assert NM == 480 and len(set(M)) == 480
    last_of = {r: max(k for k, m in enumerate(M) if m[2] == r) for r in range(8)}
    first_of = {r: min(k for k, m in enumerate(M) if m[2] == r) for r in range(8)}

    inst = {}
    use = []
    for k, (c, i, r) in enumerate(M):
        wk = ("w", 15 * c + i)
        xk = ("x", c, r + i, 1 if (k >= ph2 and c < 4 - o.keep) else 0)
        for key in (wk, xk):
            d = inst.setdefault(key, dict(first=k, last=k))
            d["last"] = k
        use.append((wk, xk))
    order = sorted(inst, key=lambda key: (inst[key]["first"], key[0] == "w"))
    reads = []
    for key in order:
        reads += [(key, 0)] if key[0] == "x" else [(key, 0), (key, 1)]
    pubs = []
    n0 = 0
    for T in o.pub:
        pubs.append([("w", n) for n in range(n0, n0 + T)])
        n0 += T
    assert n0 == 60
    pubs[0].append(("x", 0))
    src_of = lambda key: ("w", key[1]) if key[0] == "w" else ("x", key[1] >> 1)
    first_read = {}
    last_read = {}
    for t, (key, half) in enumerate(reads):
        first_read.setdefault(src_of(key), t)
        last_read[src_of(key)] = t
    tpub = [min(first_read[d] for d in g) for g in pubs]
    gi = max(i for i, t in enumerate(tpub) if t <= first_read[("x", 1)])
    pubs[gi].append(("x", 1))
    pub_at = {tpub[i]: pubs[i] for i in range(len(pubs))}
    dmas = [("x", 0, z) for z in range(5)]
    for n in range(60):
        dmas.append(("w", n))
        if o.xblk >= 0:
            if n == o.xblk: dmas += [("x", 1, z) for z in range(5)]
        elif o.x1at <= n < o.x1at + 5 * o.x1step and (n - o.x1at) % o.x1step == 0:
            dmas.append(("x", 1, (n - o.x1at) // o.x1step))
    excl = {}
    def reserve(k, tag):
        while k in excl: k += 1
        excl[k] = tag
        return k
    for it in (o.pfs.split(",") if o.pfs else []):
        p_, kind = it.split(":")
        if int(p_) >= 0: reserve(int(p_), ("pf", kind))
    kk = o.d0
    nd_ = 0
    for d in dmas[o.NP:]:
        g = int(kk + 0.5)
        while g in excl or g - 1 in excl: g += 1
        excl[g] = ("dma", d)
        nd_ += 1
        kk += o.pace0 if nd_ < o.n0 else o.pace
        if nd_ == o.n0: kk += o.pause
    klast = g
    kp = o.kpoison if o.kpoison > 0 else klast + 2
    reserve(kp, "E")
    for a in range(3): reserve(kp + 2 + o.pz * a, ("poison", a))
    reserve(o.kflag, "flag"); reserve(o.kpoll, "poll"); reserve(o.kpoll2, "poll2")
    if o.touch: reserve(kp + 1, "touch")
    pos = [0] * len(reads)
    bpos = {}
    nxt = NM
    for t in range(len(reads) - 1, -1, -1):
        p = min(inst[reads[t][0]]["first"] - o.margin, nxt - 1, o.rcap)
        while p in excl: p -= 1
        pos[t] = p
        nxt = p
        if t in pub_at:
            p -= 1
            while p in excl or p - 1 in excl: p -= 1
            bpos[t] = p
            nxt = p
    prev = -1
    for t in range(len(reads)):
        if inst[reads[t][0]]["first"] < 8 and t < 10:
            pos[t] = -1
            continue
        if t in pub_at:
            p = max(bpos[t], prev + 1)
            while p in excl: p += 1
            bpos[t] = prev = p
        p = max(pos[t], prev + 1)
        while p in excl: p += 1
        pos[t] = prev = p
        assert pos[t] < inst[reads[t][0]]["first"], (t, reads[t], pos[t])
    for t in pub_at:
        if pos[t] >= 0: excl[bpos[t]] = ("bar", t)
    free = [(-10**9, s) for s in pool]
    for t, (key, half) in enumerate(reads):
        if half == 0:
            free.sort()
            assert free[0][0] + 1 <= pos[t], ("out of fragment registers", key, pos[t], free[0])
            _, s = free.pop(0)
            inst[key]["reg"] = s
            free.append((inst[key]["last"], s))

    vmq, lq = [], []
    state = dict(vm_done=-1, lg_done=-1, bar_lg=-1)
    def vm_wait_txt(labels):
        if o.nohs: labels = [l for l in labels if not (l in ("E", "flag", "poll", "poll2") or l[0] == "poison")]
        if not labels: return []
        idx = max(i for i, l in enumerate(vmq) if l in labels)
        for l in labels: assert vmq.count(l) == (5 if l[0] == "x" else 1), l
        if idx <= state["vm_done"]: return []
        state["vm_done"] = idx
        n = len(vmq) - 1 - idx
        assert n <= 63
        return [f"s_waitcnt vmcnt({n})"]
    published = set()
    def emit_pub(t, lg=None):
        n = 1
        w = vm_wait_txt(pub_at[t])
        if lg is not None:
            w = [(w[0] + " " if w else "s_waitcnt ") + f"lgkmcnt({lg})"]
        for x in w: A(x); n += 1
        A("s_barrier")
        state["bar_lg"] = state["lg_done"]
        published.add(t)
        if t == 0: stamp()
        return n
    def emit_read(t, gap):
        key, half = reads[t]
        n = 0
        if t in pub_at and t not in published:
            n += emit_pub(t)
        reg = inst[key]["reg"]
        if key[0] == "x":
            _, c, j, _ = key
            va = VA + 2 * (j >> 3) + (c & 1)
            A(f"ds_read_b128 {reg}, v{va} offset:{(c >> 1)*XPART + (j & 3)*XWV + ((j >> 2) & 1)*XCLS}")
        else:
            slot = key[1] % NR
            m = re.fullmatch(r"([va])\[(\d+):\d+\]", reg)
            b = int(m.group(2)) + 2 * half
            so_ = ((slot % 15) // 3) * 12288 + (slot % 3) * 1024 if o.m3 else (slot % 15) * 4096
            A(f"ds_read_b64_tr_b16 {m.group(1)}[{b}:{b+1}], v{VB + (slot >= 15)} offset:{so_ + half*512}")
        lq.append((key, gap))
        return n + 1
    def lg_wait(keys, k, emit=True):
        idx = max(i for i, l in enumerate(lq) if l[0] in keys)
        if idx <= state["lg_done"]: return 0 if emit else None
        old = [i for i, l in enumerate(lq) if l[1] <= k - o.lat]
        if old: idx = max(idx, old[-1])
        n = len(lq) - 1 - idx
        if n > 15:
            n = 15; idx = len(lq) - 1 - 15
        state["lg_done"] = idx
        if not emit: return n
        A(f"s_waitcnt lgkmcnt({n})")
        return 1
    def dma_txt(d):
        if d[0] == "x":
            _, p, z = d
            so = "0" if p == 0 else f"s{sP1}"
            return [f"s_add_u32 m0, s{sXb}, {p*XPART + z*1024}",
                    f"buffer_load_dwordx4 v{VXS+z}, s[{SX}:{SX+3}], {so} offen {o.xflags} lds"]
        c, i = divmod(d[1], 15)
        so = "0" if i == 0 else f"s{sTap+i}"
        if o.m3:
            return [f"s_add_u32 m0, s{sW3}, {RING0 + ((d[1] % NR) // 3)*12288}",
                    f"buffer_load_dwordx4 v{VWS+c}, s[{SW}:{SW+3}], {so} offen offset:{(i % 3)*1024} {o.wflags} lds"]
        return [f"s_add_u32 m0, s{sXl}, {RING0 + (d[1] % NR)*4096}",
                f"buffer_load_dwordx4 v{VWS+c}, s[{SW}:{SW+3}], {so} offen {o.wflags} lds"]
    def dma_ok(d):
        if d[0] == "w" and d[1] >= NR:
            t = last_read[("w", d[1] - NR)]
            return t < len(lq) and t <= state["bar_lg"]
        return True
    pfl = []
    for it in (o.pfs.split(",") if o.pfs else []):
        p_, kind = it.split(":")
        pfl.append((int(p_), kind))
    def pf_txt(kind):
        vmq.append(("pf", kind))
        r = VPF + [k_ for _, k_ in pfl].index(kind)
        srd = SX if kind == "x" else SW
        return [f"buffer_load_dword v{VPD}, v{r}, s[{srd}:{srd+3}], 0 offen {o.pfflags}"]

    t0, t1, t2, t3, t4, t5 = VT, VT + 1, VT + 2, VT + 3, VT + 4, VT + 5
    if o.map == 0:
        bKh, bTau, bMt, bPar, bBat = 2, 3, 4, 6, 7
    elif o.map == 1:
        bKh, bTau, bMt, bPar, bBat = 4, 3, 5, 7, 2
    else:
        bKh, bTau, bMt, bPar, bBat = 1, 0, 4, 6, 7
    sKh, sJ, sU, sBat, sSl, sX0 = 38, 40, 42, 63, 48, 46
    A(f".globl {name}")
    if o.align: A(".p2align 12")
    A(".p2align 8")
    A(f".type {name},@function")
    A(f"{name}:")
    stamp()
    if o.stamps: A("s_memrealtime s[96:97]")
    if o.diag: A("s_memrealtime s[94:95]")
    A("s_load_dwordx4 s[4:7], s[0:1], 0")
    A(f"s_load_dwordx2 s[{SO}:{SO+1}], s[0:1], 16")
    A(f"s_load_dwordx2 s[{SWS}:{SWS+1}], s[0:1], 32")
    A("s_cmp_ge_u32 s2, 256")
    A("s_cbranch_scc1 L_end")
    if o.bx: A(f"s_xor_b32 s2, s2, {o.bx}")
    A(f"v_lshrrev_b32 v{t5}, 6, v0")
    A(f"v_and_b32 v{LANE}, 63, v0")
    A(f"v_readfirstlane_b32 s{sWave}, v{t5}")
    if o.codepf:
        A("s_getpc_b64 s[30:31]")
        A(f"v_min_u32 v{t0}, {o.codepf - 1}, v0")
        A(f"v_lshlrev_b32 v{t0}, 7, v{t0}")
        A(f"v_mov_b32 v{t1}, s31")
        A(f"v_add_co_u32 v{t0}, vcc, s30, v{t0}")
        A(f"s_bfe_u32 s{sKh}, s2, {0x10000 + bKh}")
        A(f"s_bfe_u32 s61, s2, {0x10000 + bTau}")
        A(f"v_addc_co_u32 v{t1}, vcc, 0, v{t1}, vcc")
        A(f"global_load_dword v{VPD}, v[{t0}:{t1}], off")
        vmq.append("code")
    else:
        A(f"s_bfe_u32 s{sKh}, s2, {0x10000 + bKh}")
        A(f"s_bfe_u32 s61, s2, {0x10000 + bTau}")
    A(f"s_lshl1_add_u32 s{sSig}, s{sKh}, s61")
    A(f"s_bfe_u32 s{sU}, s2, {0x20000 + bMt}")
    A(f"s_mul_i32 s{sU}, s{sU}, 125")
    A(f"s_sub_u32 s{sU}, s{sU}, s{sSig}")
    A(f"s_bfe_u32 s3, s2, {0x10000 + bPar}")
    A(f"s_lshl1_add_u32 s{sU}, s{sU}, s3")
    A(f"s_lshl_b32 s{sU}, s{sU}, 9")
    A(f"s_bfe_u32 s{sBat}, s2, {0x10000 + bBat}")
    A(f"s_mul_i32 s{sBat}, s{sBat}, 512000")
    A(f"s_lshl_b32 s{sXl}, s{sWave}, 10")
    A(f"s_lshl_b32 s3, s{sKh}, 8")
    A(f"s_add_u32 s3, s3, s{sU}")
    A(f"s_add_u32 s3, s3, s{sXl}")
    A(f"s_sub_u32 s{sX0}, s3, 14336")
    A(f"v_lshrrev_b32 v{t0}, 3, v{LANE}")
    A(f"v_and_b32 v{t4}, 7, v0")
    A(f"v_and_b32 v{t1}, 6, v{t0}")
    A(f"v_xor_b32 v{t1}, v{t1}, v{t4}")
    A(f"v_lshl_add_u32 v{t1}, v{t1}, 4, s{sX0}")
    A(f"v_lshl_add_u32 v{VXS}, v{t0}, 13, v{t1}")
    A(f"v_add_u32 v{t2}, 6, v{t0}")
    A(f"v_and_b32 v{t1}, 6, v{t2}")
    A(f"v_xor_b32 v{t1}, v{t1}, v{t4}")
    A(f"s_add_u32 s3, s{sX0}, 4096")
    A(f"v_lshl_add_u32 v{t1}, v{t1}, 4, s3")
    A(f"v_lshl_add_u32 v{VXS+3}, v{t2}, 13, v{t1}")
    A(f"v_cmp_gt_u32 vcc, 2, v{t0}")
    A(f"v_add_u32 v{t1}, 0x20000, v{VXS}")
    A(f"v_add_u32 v{t2}, 0xffff0000, v{VXS+3}")
    A(f"v_cndmask_b32 v{VXS+2}, v{t2}, v{t1}, vcc")
    A(f"v_add_u32 v{VXS+1}, 0x10000, v{VXS}")
    A(f"s_mul_i32 s{sXb}, s{sWave}, {XWV}")
    if o.m3: A(f"s_mul_i32 s{sW3}, s{sWave}, 3072")
    A(f"s_lshl_b32 s{sSl}, s{sKh}, 8")
    A(f"s_add_u32 s{sSl}, s{sSl}, s61")
    if o.map == 3:
        A("s_bfe_u32 s3, s2, 0x10002")
        A(f"s_bfe_u32 s{sJ}, s2, 0x10003")
        A(f"s_lshl1_add_u32 s{sJ}, s3, s{sJ}")
    else:
        A(f"s_and_b32 s{sJ}, s2, 3" if o.map != 2 else f"s_bfe_u32 s{sJ}, s2, 0x20002")
    A(f"s_lshl2_add_u32 s{sSl}, s{sSl}, s{sJ}")
    A(f"s_lshl_b32 s{sSl}, s{sSl}, 7")
    A(f"s_lshl_b32 s3, s{sWave}, 13")
    A(f"s_add_u32 s{sSl}, s{sSl}, s3")
    A(f"s_and_b32 s3, s{sWave}, 1")
    A("s_lshl_b32 s3, s3, 2")
    A(f"v_and_or_b32 v{t1}, v{t0}, 2, s3")
    A(f"v_xor_b32 v{t1}, v{t1}, v{t4}")
    A(f"v_lshl_add_u32 v{t1}, v{t1}, 4, s{sSl}")
    A(f"v_lshl_add_u32 v{VWS}, v{t0}, 10, v{t1}")
    A(f"s_mov_b32 s{SX+2}, 512000")
    A(f"s_mov_b32 s{SX+3}, 0x20000")
    A(f"s_mov_b32 s{SW+2}, 3932160")
    A(f"s_mov_b32 s{SW+3}, 0x20000")
    A("s_waitcnt lgkmcnt(0)")
    stamp()
    A(f"s_add_u32 s{SX}, s4, s{sBat}")
    A(f"s_addc_u32 s{SX+1}, s5, 0")
    A(f"s_mov_b32 s{SW}, s6")
    A(f"s_mov_b32 s{SW+1}, s7")
    mid = []
    B = mid.append
    B(f"v_cmp_gt_u32 vcc, 4, v{t0}")
    B(f"v_add_u32 v{VXS+4}, 0x10000, v{VXS+3}")
    B(f"v_mov_b32 v{t5}, {OOB}")
    B(f"v_cndmask_b32 v{VXS+4}, v{t5}, v{VXS+4}, vcc")
    assert o.map != 1 and len(pfl) <= 4
    for n_, (p_, kind) in enumerate(pfl):
        r = VPF + n_
        if kind[0] == "w":
            c0, nc = int(kind[1]), len(kind) - 1
            if n_ == 0:
                B(f"s_lshr_b32 s{sT}, s2, {bMt}")
                B(f"s_lshl_b32 s{sT}, s{sT}, 18")
                B(f"s_add_u32 s{sT}, s{sT}, s{sSl}")
                if o.pfpair:
                    B(f"s_bfe_u32 s{sT2}, s2, 0x10003")
                    B(f"s_mul_i32 s{sT2}, s{sT2}, {4096 - 128}")
                    B(f"s_add_u32 s{sT}, s{sT}, s{sT2}")
                    B(f"v_and_b32 v{t3}, 1, v{t4}")
                    B(f"v_lshl_add_u32 v{t3}, v{t3}, 7, s{sT}")
                    B(f"v_lshrrev_b32 v{t2}, 1, v{t4}")
                    B(f"v_lshl_add_u32 v{t3}, v{t2}, 10, v{t3}")
                else:
                    B(f"v_lshl_add_u32 v{t3}, v{t4}, 10, s{sT}")
                B(f"v_lshl_add_u32 v{t3}, v{t0}, 15, v{t3}")
            B(f"v_cmp_gt_u32 vcc, {nc}, v{t0}")
            B(f"v_add_u32 v{r}, {c0*32768}, v{t3}")
            B(f"s_nop 0")
            B(f"v_cndmask_b32 v{r}, v{t5}, v{r}, vcc")
        else:
            B(f"s_bfe_u32 s{sT2}, s2, {0x10000 + (3 if o.map >= 2 else bTau)}")
            B(f"s_lshl_b32 s{sT2}, s{sT2}, 12")
            B(f"s_add_u32 s{sT2}, s{sT2}, s{sX0}")
            B(f"v_cmp_gt_u32 vcc, 18, v{LANE}")
            B(f"v_lshl_add_u32 v{r}, v{LANE}, 13, s{sT2}")
            B(f"v_add_u32 v{r}, 128, v{r}")
            B(f"v_cndmask_b32 v{r}, v{t5}, v{r}, vcc")
    npfmid = len(mid)
    for i in range(1, 15): B(f"s_mov_b32 s{sTap+i}, {i*262144 - ((i % 3)*1024 if o.m3 else 0)}")
    B(f"v_and_b32 v{t0}, 15, v{LANE}")
    B(f"v_lshrrev_b32 v{t1}, 4, v{LANE}")
    for d in range(3):
        if d: B(f"v_add_u32 v{t2}, {d}, v{t0}")
        md = t2 if d else t0
        B(f"v_and_b32 v{t3}, 6, v{md}")
        B(f"v_xor_b32 v{t3}, v{t3}, v{t1}")
        B(f"v_lshlrev_b32 v{t3}, 4, v{t3}")
        B(f"v_lshl_add_u32 v{VA+2*d}, v{md}, 7, v{t3}")
    B(f"v_lshrrev_b32 v{t2}, 2, v{t0}")
    if o.m3: B(f"v_mad_u32_u24 v{t2}, v{t1}, 24, v{t2}")
    else: B(f"v_lshl_add_u32 v{t2}, v{t1}, 3, v{t2}")
    B(f"v_bfe_u32 v{t3}, v{LANE}, 3, 2")
    B(f"v_xor_b32 v{t3}, s{sWave}, v{t3}")
    B(f"v_lshlrev_b32 v{t3}, 5, v{t3}")
    B(f"v_lshl_add_u32 v{t3}, v{t2}, 7, v{t3}")
    B(f"v_and_b32 v{t2}, 3, v{LANE}")
    B(f"v_lshl_add_u32 v{t3}, v{t2}, 3, v{t3}")
    B(f"v_add_u32 v{VB}, {RING0}, v{t3}")
    B(f"v_add_u32 v{VB+1}, {RING0 + 15*4096}, v{t3}")
    for d in range(3): B(f"v_xor_b32 v{VA+2*d+1}, 64, v{VA+2*d}")
    for c in range(1, 4): B(f"v_add_u32 v{VWS+c}, {c*32768}, v{VWS}")
    B(f"s_movk_i32 s{sP1}, 128")
    late = []
    B = late.append
    B([f"s_add_u32 s{SO}, s{SO}, s{sBat}", f"s_addc_u32 s{SO+1}, s{SO+1}, 0"])
    B(f"s_mov_b32 s{SO+2}, 512000")
    B(f"s_mov_b32 s{SO+3}, 0x20000")
    B(f"s_mov_b32 s{SWS+2}, 0x2000000")
    B(f"s_mov_b32 s{SWS+3}, 0x20000")
    B(f"s_lshr_b32 s3, s2, {bMt}")
    if o.map != 1:
        B(f"s_lshl2_add_u32 s3, s3, s{sJ}")
    else:
        B("s_and_b32 s4, s2, 7")
        B("s_lshl3_add_u32 s3, s3, s4")
    B(f"s_lshl2_add_u32 s4, s3, s{sWave}")
    B("s_mul_i32 s4, s4, 640")
    B(f"s_add_u32 s{sRec}, s4, {(3 << 20) + 4096}")
    B("s_lshl_b32 s3, s3, 14")
    B(f"s_add_u32 s3, s3, s{sXl}")
    B(f"s_lshl_b32 s5, s{sSig}, 12")
    B("s_add_u32 s5, s5, s3")
    for a in range(3):
        B(f"s_sub_u32 s4, s{sSig}, {a+1}")
        B("s_and_b32 s4, s4, 3")
        B("s_lshl_b32 s4, s4, 12")
        B(f"s_add_u32 s{sSend+a}, s4, s3")
        B([f"s_cmp_le_u32 s{sSig}, {2-a}", "s_cselect_b32 s4, 8, 0"])
        B(f"s_add_u32 s{sRecv+a}, s5, s4")
        if a < 2:
            B("s_add_u32 s3, s3, 0x100000")
            B("s_add_u32 s5, s5, 0x100000")
    B(f"v_lshlrev_b32 v{VE}, 4, v{LANE}")
    for q in range(4): B(f"v_mov_b32 v{VIN+q}, -1")
    B(f"v_mov_b32 v{VEP}, 0")
    B(f"v_mov_b32 v{t3}, {OOB}")
    B(f"s_lshl_b32 s4, s{sSig}, 7")
    B(f"v_add_u32 v{t2}, s4, v{VE}")
    B(f"v_cmp_gt_u32 vcc, 8, v{LANE}")
    B(f"v_and_b32 v{VFP}, 3, v{LANE}")
    B(f"v_lshlrev_b32 v{VFP}, 7, v{VFP}")
    B(f"v_cndmask_b32 v{VFL}, v{t3}, v{t2}, vcc")
    B(f"v_mov_b32 v{VEP+1}, 0")
    B(f"v_mov_b32 v{VEP+2}, 0")
    B(f"s_lshl2_add_u32 s3, s{sJ}, s{sWave}")
    B("s_lshl_b32 s3, s3, 5")
    B(f"s_add_u32 s3, s3, s{sU}")
    B("s_add_u32 s3, s3, 3072")
    B(f"v_lshl_add_u32 v{t2}, v{t1}, 3, s3")
    B(f"v_lshl_add_u32 v{VO}, v{t0}, 13, v{t2}")
    B([f"s_cmp_eq_u32 s{sSig}, 3", "s_cselect_b32 s3, 16, 15"])
    B([f"s_cmp_eq_u32 s{sSig}, 3", f"s_cselect_b32 s{sMask+1}, -1, 0x7fffffff"])
    B(f"v_cmp_gt_u32 vcc, s3, v{t0}")
    B(f"v_add_u32 v{VO+1}, 4096, v{VO}")
    B(f"s_mov_b32 s{sMask}, -1")
    B(f"v_cndmask_b32 v{VO+1}, v{t3}, v{VO+1}, vcc")
    B(f"s_mov_b32 s3, 0x4038aa3b")
    B([f"s_bitcmp1_b32 s{sSig}, 0", f"s_cselect_b32 s{sC1}, 0xbfb8aa3b, s3"])
    B([f"s_bitcmp1_b32 s{sSig}, 0", f"s_cselect_b32 s{sA1}, 0, 1.0"])
    B([f"s_bitcmp1_b32 s{sSig}, 0", f"s_cselect_b32 s{sA2}, 1.0, 0"])
    if o.stamps: B("s_mov_b32 s43, 0")
    di = 0
    pfq = list(pfl)
    nmid0 = len(mid)
    if o.pfonly:
        for x in mid[:npfmid]: A(x)
        for _, kind in pfl:
            for x in pf_txt(kind): A(x)
        A("s_waitcnt vmcnt(0)")
        A("s_endpgm")
    while di < o.NP:
        while pfq and pfq[0][0] <= di - 1000:
            while nmid0 - len(mid) < npfmid: A(mid.pop(0))
            for x in pf_txt(pfq.pop(0)[1]): A(x)
        tx = dma_txt(dmas[di])
        if dmas[di][0] == "w" and dmas[di][1] > 0:
            while nmid0 - len(mid) < npfmid + dmas[di][1]: A(mid.pop(0))
        if tx[0] != state.get("m0"):
            A(tx[0]); state["m0"] = tx[0]
            if mid: A(mid.pop(0))
        A(tx[1])
        vmq.append(dmas[di][:2]); di += 1
        if di in o.pstat: stamp()
        for _ in range(o.midn if di < o.NPa else len(mid)):
            if mid: A(mid.pop(0))
        if di == o.NPa and o.latepro:
            for it in late:
                for x in ([it] if isinstance(it, str) else it): A(x)
            late = []
        if di == o.itat and o.itouch:
            A("s_mov_b64 exec, 0")
            A("s_branch L_touch0")
            A("L_touched:")
            A("s_mov_b64 exec, -1")
    assert not mid
    while pfq and pfq[0][0] < 0:
        for x in pf_txt(pfq.pop(0)[1]): A(x)

    side = []
    hq = []
    slow = []
    def vm(txt, label):
        def f():
            if o.nohs and (label in ("E", "flag", "poll", "poll2") or label[0] == "poison"): return []
            vmq.append(label); return [txt]
        f.vm = True
        return f
    def wait(labels):
        return lambda: vm_wait_txt(labels)
    ws = f"s[{SWS}:{SWS+3}]"
    side.append((-1, [it if isinstance(it, str) else (lambda it=it: it) for it in late]))
    fixed = {}
    fixed["E"] = vm(f"buffer_load_dword v{VEP}, v{VEP}, {ws}, s{sRec} offen sc1", "E")
    for a in range(3):
        fixed[("poison", a)] = vm(f"buffer_store_dwordx4 v[{VIN}:{VIN+3}], v{VE}, {ws}, s{sSend+a} offen sc1", ("poison", a))
    side.append((o.kflag - 12, [wait(["E"]), f"v_add_u32 v{VEP}, {0 if o.nohs else EPC}, v{VEP}", lambda: state.update(ep=1) or []]))
    def flag():
        assert state.get("ep")
        return vm_wait_txt([("poison", 2)]) + vm(f"buffer_store_dwordx4 v[{VEP}:{VEP+3}], v{VFL}, {ws}, s{sRec} offen offset:128 sc1", "flag")()
    fixed["flag"] = flag
    fixed["poll"] = vm(f"buffer_load_dword v{VFV}, v{VFP}, {ws}, s{sRec} offen offset:128 sc1", "poll")
    for _, kind in pfq: fixed[("pf", kind)] = (lambda kind=kind: pf_txt(kind))
    ld_flag = lambda r: f"buffer_load_dword v{r}, v{VFP}, {ws}, s{sRec} offen offset:128 sc1"
    ld_in = lambda a: f"buffer_load_dwordx4 v[{VIN+4*a}:{VIN+4*a+3}], v{VE}, {ws}, s{sRecv+a} offen sc1"
    fixed["poll2"] = vm(ld_flag(VFV + 1), "poll2")
    fixed["touch"] = vm(f"buffer_load_dword v{VPD}, v{VO}, s[{SO}:{SO+3}], 0 offen", "touch")
    spin = lambda inc: ([f"s_add_u32 s43, s43, {inc}"] if o.stamps else []) + [
        f"s_add_u32 s{sSpin}, s{sSpin}, 1", f"s_cmp_gt_u32 s{sSpin}, {o.spin}", "s_cbranch_scc1 L_end"]
    side.append((o.kcheck, [f"s_mov_b32 s{sSpin}, 0", wait(["poll"]),
                            lambda: state.update(flagok=1) or [f"v_cmp_ne_u32 s[{sBad}:{sBad+1}], v{VFV}, v{VEP}"]]))
    def send(a):
        b0, b1 = ACC + 4 * a, ACC + 4 * (a + 4)
        p = []
        for q in range(4): p.append(f"v_mul_f32 v{b0+q}, s{sC1}, v{b0+q}")
        p.append(f"v_cvt_pk_bf16_f32 v{b0}, v{b0}, v{b0+1}")
        p.append(f"v_cvt_pk_bf16_f32 v{b0+1}, v{b0+2}, v{b0+3}")
        for q in range(2): p.append(f"v_min_u32 v{b0+q}, -2, v{b0+q}")
        side.append((last_of[a], ["s_nop 1"] * 3 + p))
        p = []
        for q in range(4): p.append(f"v_mul_f32 v{b1+q}, s{sC1}, v{b1+q}")
        p.append(f"v_cvt_pk_bf16_f32 v{b0+2}, v{b1}, v{b1+1}")
        p.append(f"v_cvt_pk_bf16_f32 v{b0+3}, v{b1+2}, v{b1+3}")
        for q in range(2, 4): p.append(f"v_min_u32 v{b0+q}, -2, v{b0+q}")
        p.append(vm(f"buffer_store_dwordx4 v[{b0}:{b0+3}], v{VE}, {ws}, s{sSend+a} offen sc1", ("send", a)))
        side.append((last_of[a + 4], ["s_nop 1"] * 3 + p))
    def recv(a, k):
        hq.append((k, vm(ld_in(a), ("recv", a))))
    def chk(a, x, prev=None):
        r0 = VIN + 4 * a
        c = [f"v_max_u32 v{x+1}, v{r0+2}, v{r0+3}", f"v_cndmask_b32 v{x+1}, 0, v{x+1}, s[{sMask}:{sMask+1}]"]
        if prev is None:
            return c + [f"v_max3_u32 v{x}, v{x+1}, v{r0}, v{r0+1}"]
        return c + [f"v_max3_u32 v{x+1}, v{x+1}, v{r0}, v{r0+1}", f"v_max_u32 v{x}, v{x}, v{x+1}"]
    send(0); recv(0, o.kr[0])
    send(2); recv(2, o.kr[1])
    send(1); recv(1, o.kr[2])
    kb = [k_ for k_ in o.kb if k_ > 0]
    for n_, k_ in enumerate(kb): hq.append((k_, vm(ld_in(1), ("bak", n_))))
    hq.sort(key=lambda x: x[0])
    TA, TB, X = VT + 8, VT + 16, VT
    unpack = lambda a, d: [t for q in range(4) for t in
                           (f"v_lshlrev_b32 v{d+2*q}, 16, v{VIN+4*a+q}", f"v_and_b32 v{d+2*q+1}, 0xffff0000, v{VIN+4*a+q}")]
    other = unpack(2, TB)
    for q in range(8): other.append(f"v_add_f32 v{TA+q}, v{TA+q}, v{TB+q}")
    for q in range(8): other.append(f"v_exp_f32 v{TA+q}, v{TA+q}")
    for q in range(8): other.append(f"v_add_f32 v{TA+q}, 1.0, v{TA+q}")
    for q in range(8): other.append(f"v_rcp_f32 v{TA+q}, v{TA+q}")
    for q in range(8): other.append(f"v_fma_f32 v{TB+q}, v{TA+q}, -2.0, s{sA2}")
    for q in range(8): other.append(f"v_mul_f32 v{TA+q}, s{sA1}, v{TA+q}")
    side.append((o.kr[3], [wait([("recv", 0)])] + chk(0, X) + unpack(0, TA)))
    side.append((o.kr[4], [wait([("recv", 2), "poll2"])] + chk(2, X, X) + [f"v_cmp_eq_u32 vcc, -1, v{X}",
                 lambda: state.update(ochk=1, nhq=len(hq)) or [f"s_or_b64 s[{sBad}:{sBad+1}], s[{sBad}:{sBad+1}], vcc", "s_cbranch_scc1 L_again", "L_backo:"]] + other))
    slow += ["L_again:", f"v_cmp_ne_u32 vcc, v{VFV+1}, v{VEP}", "s_cbranch_vccz L_again1", ld_flag(VFV + 1)] + spin(1) + [
             "s_waitcnt vmcnt(0)", "s_branch L_again", "L_again1:", ld_in(0), ld_in(2), ld_in(1), "s_branch L_backo"]
    nlate = sum(1 for k_ in kb + [o.kr[2]] if k_ > o.kr[4] + 4)
    po = pack(unpack(0, TA) + other)
    slow += ["L_rec:", f"s_waitcnt vmcnt({1 + nlate})", "L_rec2:"] + chk(0, X) + chk(2, X, X) + [
             f"v_cmp_eq_u32 vcc, -1, v{X}", "s_cbranch_vccnz L_rec1", ld_in(1)] + po + ["s_waitcnt vmcnt(1)", "s_branch L_slows2" if kb else "s_branch L_slows3"]
    slow += ["L_rec1:", ld_in(0), ld_in(2)] + spin(256) + ["s_waitcnt vmcnt(0)", "s_branch L_rec2"]
    if not kb:
        slow += ["L_slows3:"] + chk(1, X) + [f"v_cmp_eq_u32 vcc, -1, v{X}", "s_cbranch_vccz L_backs", "s_waitcnt vmcnt(0)", "s_branch L_slows2"]
    slow += ["L_slows:", ld_in(1)] + spin(65536) + [f"s_waitcnt vmcnt({len(kb)})", "L_slows2:"] + chk(1, X) + [
             f"v_cmp_eq_u32 vcc, -1, v{X}", "s_cbranch_vccnz L_slows", "s_branch L_backs"]
    U = ACC + 16
    fin = [wait([("recv", 1)])] + chk(1, X) + [f"v_cmp_eq_u32 vcc, -1, v{X}", lambda: ["s_cbranch_vccnz L_slows", "L_backs:"]] + unpack(1, U)
    regs = [(ACC + 4 * r + q, 4 * h + q) for h, r in enumerate(own) for q in range(4)]
    for b, e in regs: fin.append(f"v_fma_f32 v{b}, v{b}, s{sC1}, v{U+e}")
    for b, e in regs: fin.append(f"v_exp_f32 v{b}, v{b}")
    for b, e in regs: fin.append(f"v_add_f32 v{b}, 1.0, v{b}")
    for h, r in enumerate(own):
        b = ACC + 4 * r
        for q in range(4): fin.append(f"v_rcp_f32 v{b+q}, v{b+q}")
        for q in range(4): fin.append(f"v_fma_f32 v{b+q}, v{b+q}, v{TB+4*h+q}, v{TA+4*h+q}")
        fin.append(f"v_cvt_pk_bf16_f32 v{b}, v{b}, v{b+1}")
        fin.append(f"v_cvt_pk_bf16_f32 v{b+1}, v{b+2}, v{b+3}")
        fin.append(vm(f"buffer_store_dwordx2 v[{b}:{b+1}], v{VO+h}, s[{SO}:{SO+3}], 0 offen {o.oflags}", ("out", h)))
    side.append((10**5, fin))
    side.append((o.kcheck - 8, [lambda: [f"s_cmp_lg_u32 s{sSig}, 0", f"s_cselect_b32 s{sT2}, 0x2000000, s{sRec}"]]))
    side.append((o.keupd, [vm(f"buffer_store_dword v{VEP}, v{VFL}, {ws}, s{sT2} offen {o.eflags}", "Eupd")]))
    side.sort(key=lambda x: x[0])
    sq = []
    for k, p in side:
        for it in p: sq.append((k, it))
    def cost(t):
        if t.endswith(":"): return 0
        return 2 if (t.split()[0] in TRANS or t == "s_nop 1") else 1

    dgaps = sorted(g for g, tag in excl.items() if tag[0] == "dma")
    def set_m0():
        t_ = dma_txt(excl[dgaps[0]][1])[0]
        if t_ == state.get("m0"): return 0
        A(t_); state["m0"] = t_
        return 1
    set_m0()
    rt = 0
    while rt < len(reads) and pos[rt] < 0:
        emit_read(rt, max(0, rt - 2)); rt += 1
    info = []
    rgaps = set(pos)
    def needs_wait(kk):
        iss = [ii for ii, l in enumerate(lq) if l[0] in use[kk]]
        return max(iss) > state["lg_done"]
    def all_issued(kk):
        return all(sum(1 for l in lq if l[0] == key) == (2 if key[0] == "w" else 1) for key in use[kk])
    for k in range(NM):
        c, i, r = M[k]
        wk, xk = use[k]
        lg_wait((wk, xk), k)
        acc = f"v[{ACC+4*r}:{ACC+4*r+3}]"
        A(f"v_mfma_f32_16x16x32_bf16 {acc}, {inst[wk]['reg']}, {inst[xk]['reg']}, {'0' if k == first_of[r] else acc}")
        used = 0
        if k in excl:
            tag = excl[k]
            if tag[0] == "dma":
                d = tag[1]
                assert d == dmas[di] and dma_ok(d), (k, d)
                tx = dma_txt(d)
                set_m0()
                A(tx[1]); vmq.append(d[:2]); di += 1
                dgaps.pop(0)
                info.append(f"{d[0]}{d[1]}@{k}")
            elif tag[0] == "bar":
                emit_pub(tag[1])
            else:
                for x in fixed[tag](): A(x)
            assert not (rt < len(reads) and pos[rt] <= k)
        else:
            while rt < len(reads) and pos[rt] <= k:
                used += emit_read(rt, k); rt += 1
            kk = k + 1
            keys = ()
            while kk < NM:
                if all_issued(kk) and needs_wait(kk): keys += use[kk]
                if kk not in excl: break
                kk += 1
            barw = k + 1 in excl and excl[k + 1][0] == "bar"
            if keys or barw: used += 1
            while used < 2:
                if dgaps and dma_txt(excl[dgaps[0]][1])[0] != state.get("m0") and (
                        used == 0 or not any(g_ not in excl and g_ not in rgaps for g_ in range(k + 1, dgaps[0]))):
                    used += set_m0()
                    continue
                if hq and hq[0][0] <= k and state.get("flagok"):
                    if used: break
                    for x in hq.pop(0)[1](): A(x)
                    used = 2
                    continue
                if sq and sq[0][0] <= k:
                    it = sq[0][1]
                    if isinstance(it, str) and cost(it) + used > 2: break
                    if not isinstance(it, str) and used and (sq[0][0] < 0 or getattr(it, "vm", False)): break
                    sq.pop(0)
                    for x in ([it] if isinstance(it, str) else it()):
                        A(x); used += cost(x)
                    if getattr(it, "vm", False): used = 2
                    continue
                break
            w = vm_wait_txt(pub_at[excl[k + 1][1]]) if barw else []
            if keys:
                n = lg_wait(keys, k + 1, False)
                w = [(w[0] + " " if w else "s_waitcnt ") + f"lgkmcnt({n})"]
            for x in w: A(x)
        if o.stamps and k in o.stat: stamp()
    assert di == len(dmas) and rt == len(reads), (di, len(dmas), rt)
    A(f"; tail: {len(sq)} side instructions left")
    if o.verbose:
        print("dma issue:", " ".join(info), file=sys.stderr)
        print("publish:", " ".join(f"{bpos[t]}:{g[0][1]}-{max(x[1] for x in g if x[0]=='w')}{'+x' if any(x[0]=='x' for x in g) else ''}" for t, g in sorted(pub_at.items())), file=sys.stderr)
        print("pair_done", pair_done, "tail", len(sq), file=sys.stderr)
    assert not hq and state.get("ochk") and state["nhq"] == nlate, (state, nlate)
    A(f"s_cmp_lg_u64 s[{sBad}:{sBad+1}], 0")
    A("s_cbranch_scc1 L_rec")
    tl = []
    while sq:
        it = sq.pop(0)[1]
        tl += [it] if isinstance(it, str) else it()
    for x in pack(tl): A(x)
    if o.stamps and o.diag:
        stamp()
        A("s_waitcnt vmcnt(0)")
        stamp()
    elif o.stamps:
        stamp()
        A("s_waitcnt vmcnt(0)")
        stamp()
        A("s_memrealtime s[98:99]")
        A("s_waitcnt lgkmcnt(0)")
        A("s_lshl_b32 s3, s2, 2")
        A(f"s_add_u32 s3, s3, s{sWave}")
        A("s_lshl_b32 s3, s3, 7")
        A("s_add_u32 s3, s3, 0x1000000")
        A("v_mov_b32 v30, s3")
        assert STAMP + 2 * nst[0] <= 94
        for b in range(1, nst[0]):
            A(f"s_sub_u32 s3, s{STAMP+2*b}, s{STAMP}")
            A("v_mov_b32 v31, s3")
            A(f"buffer_store_dword v31, v30, {ws}, 0 offen offset:{4*b}")
        A(f"s_getreg_b32 s3, hwreg(HW_REG_XCC_ID)")
        A(f"v_mov_b32 v31, s3")
        A(f"buffer_store_dword v31, v30, {ws}, 0 offen offset:{4*28}")
        A(f"v_mov_b32 v31, {nst[0] + 256*o.rt}")
        A(f"buffer_store_dword v31, v30, {ws}, 0 offen offset:0")
        A(f"v_mov_b32 v31, s43")
        A(f"buffer_store_dword v31, v30, {ws}, 0 offen offset:{4*29}")
        A("v_mov_b32 v31, s96")
        A(f"buffer_store_dword v31, v30, {ws}, 0 offen offset:{4*30}")
        A("v_mov_b32 v31, s98")
        A(f"buffer_store_dword v31, v30, {ws}, 0 offen offset:{4*31}")
    if o.diag:
        A("s_waitcnt vmcnt(0) lgkmcnt(0)")
        A("s_mov_b32 s3, 0")
        d = o.diag.split(":")
        if d[0] == "xcc":
            A("s_getreg_b32 s3, hwreg(HW_REG_XCC_ID)")
            A("s_sub_u32 s3, s3, s2")
            A("s_and_b32 s3, s3, 7")
            A("s_mul_i32 s3, s3, 500")
        if d[0] == "enc":
            A(f"s_sub_u32 s3, s{STAMP+2*int(d[2])}, s{STAMP+2*int(d[1])}")
            A(f"s_mul_i32 s3, s3, {d[3]}")
            A("s_min_u32 s3, s3, 20000")
            if len(d) > 4:
                A(f"s_cmp_eq_u32 s2, {d[4]}")
                A("s_cselect_b32 s3, s3, 0")
        A("s_add_u32 s3, s3, 4000")
        A("L_spin:")
        A("s_memrealtime s[4:5]")
        A("s_waitcnt lgkmcnt(0)")
        A("s_sub_u32 s6, s4, s94")
        A("s_cmp_lt_u32 s6, s3")
        A("s_cbranch_scc1 L_spin")
    A("L_end:")
    A("s_endpgm")
    L.extend(slow)
    if o.abl:
        first = next(i for i, l in enumerate(L) if l.startswith("v_mfma"))
        end = next(i for i, l in enumerate(L) if l.startswith("; tail"))
        K = []
        for i, l in enumerate(L):
            if first < i < end:
                if "b" in o.abl and l == "s_barrier": continue
                if "d" in o.abl and l.endswith(" lds"): continue
                if "w" in o.abl and l.startswith("s_waitcnt vmcnt"):
                    l = re.sub(r"vmcnt\(\d+\)", "", l)
                    if l.strip() == "s_waitcnt": continue
                if "l" in o.abl and l.startswith("s_waitcnt lgkmcnt"): continue
                if "r" in o.abl and l.startswith("ds_read"): continue
                if "x" in o.abl and (" sc1" in l or l.startswith("s_cbranch")): continue
                if "v" in o.abl and l.startswith("v_") and not l.startswith("v_mfma") and not l.startswith("v_cmp"): continue
            if "x" in o.abl and i >= end and (l.startswith("s_cbranch_vccnz L_slows") or l.startswith("s_cbranch_scc1 L_rec")): continue
            K.append(l)
        L = K
    return fix_hazards(L), NV, RING0 + NR * 4096

def disasm(lines):
    import subprocess, tempfile
    d = tempfile.mkdtemp()
    open(d + "/a.s", "w").write('.amdgcn_target "amdgcn-amd-amdhsa--gfx950"\n.text\n' + "\n".join(lines) + "\n")
    subprocess.run(["clang", "-x", "assembler", "-target", "amdgcn-amd-amdhsa", "-mcpu=gfx950", "-c", d + "/a.s", "-o", d + "/a.o"], check=True)
    dis = subprocess.run(["llvm-objdump", "-d", "--mcpu=gfx950", d + "/a.o"], capture_output=True, text=True).stdout
    return [int(l.split("//")[1].split(":")[0], 16) for l in dis.splitlines() if "//" in l]

def add_touches(body, extra, entry_off=0x300):
    isins = lambda l: l.split(";")[0].strip() and not l.strip().endswith(":") and not l.startswith(".")
    n = 0
    while True:
        ad = disasm(body + [f"L_touch{n}:"])
        idx = [i for i, l in enumerate(body) if isins(l)]
        assert len(idx) == len(ad)
        page = 4096 * (n + 1) - entry_off
        if ad[-1] < page: break
        cand = [(i, a) for i, a in zip(idx, ad) if page <= a <= page + 56]
        best = None
        for i, a in cand:
            if body[i].startswith("v_mfma"):
                j, cnt = i - 1, 0
                while not body[j].startswith("v_mfma"):
                    cnt += 2 if (body[j].startswith("buffer") or body[j] == "s_barrier" or body[j].split()[0] in TRANS or body[j] == "s_nop 1") else 1
                    j -= 1
                if best is None or cnt < best[0]: best = (cnt, i)
        i = best[1]
        body = body[:i] + [f"L_touch{n}:", f"s_cbranch_execz L_touch{n+1}"] + body[i:]
        n += 1
    for lab in extra:
        i = body.index(lab + ":")
        assert body[i - 1].split()[0] in ("s_branch", "s_endpgm")
        body = body[:i] + [f"L_touch{n}:", f"s_branch L_touch{n+1}"] + body[i:]
        n += 1
    return [l.replace(f"L_touch{n}", "L_touched") for l in body]

def build(o):
    body, nv, lds = gen_main(KNAME, o)
    if o.itouch: body = add_touches(body, ["L_again", "L_rec1"][:o.itouch - 1])
    txt = HDR + f"; @launch grid=(256,1,1) block=(256,1,1) lds={lds}\n"
    txt += '.amdgcn_target "amdgcn-amd-amdhsa--gfx950"\n.text\n' + "\n".join(body) + "\n"
    if o.codepf:
        txt += ".fill 64, 4, 0xbf810000\n"
    txt += f""".section .rodata,"a"
.p2align 6
.amdhsa_kernel {KNAME}
  .amdhsa_next_free_vgpr {nv}
  .amdhsa_next_free_sgpr 102
  .amdhsa_accum_offset 256
  .amdhsa_group_segment_fixed_size 0
  .amdhsa_kernarg_size 40
  .amdhsa_user_sgpr_count 2
  .amdhsa_user_sgpr_kernarg_segment_ptr 1
  .amdhsa_system_sgpr_workgroup_id_x 1
.end_amdhsa_kernel
"""
    return txt

def opts(argv=None):
    p = argparse.ArgumentParser()
    il = lambda s: [int(x) for x in s.split(",")]
    p.add_argument("-o", default="/dev/stdout")
    p.add_argument("--NR", type=int, default=30)
    p.add_argument("--nd", type=int, default=30)
    p.add_argument("--keep", type=int, default=2)
    p.add_argument("--nacc", type=int, default=64)
    p.add_argument("--groups", type=lambda s: [il(x) for x in s.split("/")], default="1,1,1,2,2,3,5/5,5,5/7,8/15")
    p.add_argument("--pub", type=il, default="1,1,1,2,2,3,5,5,5,5,5,5,5,5,5,5")
    p.add_argument("--margin", type=int, default=7)
    p.add_argument("--lat", type=int, default=5)
    p.add_argument("--NP", type=int, default=11)
    p.add_argument("--pace", type=float, default=4.5)
    p.add_argument("--x1at", type=int, default=18)
    p.add_argument("--x1step", type=int, default=2)
    p.add_argument("--pfs", default="-994:w0,-1:w123")
    p.add_argument("--d0", type=float, default=2)
    p.add_argument("--pace0", type=float, default=4.5)
    p.add_argument("--n0", type=int, default=0)
    p.add_argument("--pause", type=float, default=0)
    p.add_argument("--kb", type=il, default="0,0,0")
    p.add_argument("--depth", type=int, default=3)
    p.add_argument("--nap", type=int, default=2)
    p.add_argument("--keupd", type=int, default=10**6)
    p.add_argument("--eflags", default="")
    p.add_argument("--pfpair", type=int, default=0)
    p.add_argument("--bx", type=int, default=0)
    p.add_argument("--pfonly", type=int, default=0)
    p.add_argument("--nohs", type=int, default=0)
    p.add_argument("--pstat", type=il, default="99")
    p.add_argument("--m3", type=int, default=0)
    p.add_argument("--xblk", type=int, default=-1)
    p.add_argument("--pz", type=int, default=5)
    p.add_argument("--kpoison", type=int, default=0)
    p.add_argument("--kflag", type=int, default=330)
    p.add_argument("--kpoll", type=int, default=362)
    p.add_argument("--kcheck", type=int, default=395)
    p.add_argument("--kr", type=il, default="392,418,448,432,458")
    p.add_argument("--kpoll2", type=int, default=420)
    p.add_argument("--touch", type=int, default=0)
    p.add_argument("--itouch", type=int, default=0)
    p.add_argument("--itat", type=int, default=9)
    p.add_argument("--rcap", type=int, default=480)
    p.add_argument("--NPa", type=int, default=7)
    p.add_argument("--midn", type=int, default=5)
    p.add_argument("--latepro", type=int, default=1)
    p.add_argument("--spin", type=int, default=200000)
    p.add_argument("--xflags", default="")
    p.add_argument("--wflags", default="")
    p.add_argument("--pfflags", default="")
    p.add_argument("--oflags", default="")
    p.add_argument("--stamps", type=int, default=0)
    p.add_argument("--rt", type=int, default=0)
    p.add_argument("--stat", type=il, default="119,239,359,419,479")
    p.add_argument("--align", type=int, default=1)
    p.add_argument("--verbose", type=int, default=0)
    p.add_argument("--abl", default="")
    p.add_argument("--map", type=int, default=2)
    p.add_argument("--codepf", type=int, default=-1)
    p.add_argument("--diag", default="")
    return p.parse_args(argv)

def code_lines(txt):
    import subprocess, tempfile, os
    d = tempfile.mkdtemp()
    open(d + "/a.s", "w").write(txt)
    subprocess.run(["clang", "-x", "assembler", "-target", "amdgcn-amd-amdhsa", "-mcpu=gfx950", "-c", d + "/a.s", "-o", d + "/a.o"], check=True)
    dis = subprocess.run(["llvm-objdump", "-d", "--mcpu=gfx950", d + "/a.o"], capture_output=True, text=True).stdout
    addr = lambda l: int(l.split("//")[1].split(":")[0], 16)
    ls = [l for l in dis.splitlines() if "//" in l]
    pc = next(addr(l) for l in ls if "s_getpc" in l) + 4
    end = max(addr(l) for l in ls if "s_branch L_back" in l) + 4
    return (end - pc) // 128 + 2

if __name__ == "__main__":
    o = opts()
    if o.codepf < 0:
        o.codepf = 100
        v, o.verbose = o.verbose, 0
        o.codepf = code_lines(build(o))
        o.verbose = v
    open(o.o, "w").write(build(o))
```

```python
import sys, argparse, re

KNAME = "standalone__autoregressive_conv_wavernn__speech_kernel"
HDR = """; Kernarg layout for this problem (40 bytes, ptrs only, base s[0:1]):
"""
XPART, XCLS, XWV = 20480, 2304, 5120
RING0 = 2 * XPART
OOB = 0x7ffffff0
EPC = 0x9e3779b1

def regs_of(tok):
    m = re.fullmatch(r"([va])\[(\d+):(\d+)\]", tok)
    if m:
        return {(m.group(1), i) for i in range(int(m.group(2)), int(m.group(3)) + 1)}
    m = re.fullmatch(r"-?([va])(\d+)", tok)
    if m:
        return {(m.group(1), int(m.group(2)))}
    return set()

TRANS = ("v_exp_f32", "v_rcp_f32")
def fix_hazards(lines):
    out = []
    hist = []
    def dist_needed(pred, need):
        d = 0
        for h in reversed(hist):
            if d >= need:
                return 0
            if pred(h):
                return need - d
            d += h["w"]
        return 0
    for ln in lines:
        s = ln.split(";")[0].strip()
        if not s or s.endswith(":") or s.startswith("."):
            out.append(ln)
            continue
        mn, *rest = s.split(None, 1)
        ops = [t.strip() for t in rest[0].split(",")] if rest else []
        ops = [t.split()[0] if t else t for t in ops]
        h = dict(mn=mn, w=1, wr=set(), rd=set(), mf=False, valu=False, c=set(), swr=set(), store=False)
        if mn == "s_nop":
            h["w"] = int(ops[0]) + 1
        isv = mn.startswith("v_")
        if mn.startswith("v_mfma"):
            h["mf"] = True
            h["wr"] = regs_of(ops[0]); h["rd"] = regs_of(ops[1]) | regs_of(ops[2]); h["c"] = regs_of(ops[3])
        elif isv:
            h["valu"] = True
            if mn.startswith("v_cmp") or mn.startswith("v_readfirstlane"):
                h["swr"] = {ops[0]}
                for t in ops[1:]: h["rd"] |= regs_of(t)
            else:
                h["wr"] = regs_of(ops[0])
                for t in ops[1:]: h["rd"] |= regs_of(t)
                if "_co_" in mn: h["swr"] = {"vcc"}
        elif mn.startswith("buffer_store") or mn.startswith("ds_write"):
            for t in ops: h["rd"] |= regs_of(t)
            h["store"] = mn.endswith("x4") or mn.endswith("x3")
            h["data"] = regs_of(ops[0])
        elif mn.startswith("buffer_load") or mn.startswith("global_load"):
            if s.endswith(" lds"):
                h["rd"] = regs_of(ops[0])
            else:
                h["wr"] = regs_of(ops[0]); h["rd"] = regs_of(ops[1])
        elif mn.startswith("ds_read"):
            h["wr"] = regs_of(ops[0]); h["rd"] = regs_of(ops[1])
        n = 0
        touch = h["wr"] | h["rd"]
        if h["mf"]:
            n = max(n, dist_needed(lambda p: p["valu"] and p["wr"] & (h["rd"] | h["c"]), 2))
            n = max(n, dist_needed(lambda p: p["mf"] and p["wr"] & h["rd"], 8))
            n = max(n, dist_needed(lambda p: p["mf"] and (p["wr"] & h["c"]) and p["wr"] != h["c"], 6))
        elif touch:
            n = max(n, dist_needed(lambda p: p["mf"] and p["wr"] & touch, 8))
        if h["valu"]:
            n = max(n, dist_needed(lambda p: p["mf"] and p["c"] & h["wr"], 3))
            n = max(n, dist_needed(lambda p: p["store"] and p["data"] & h["wr"], 2))
            if mn not in TRANS:
                n = max(n, dist_needed(lambda p: p["mn"] in TRANS and p["wr"] & h["rd"], 1))
            if mn.startswith("v_readfirstlane"):
                n = max(n, dist_needed(lambda p: p["valu"] and p["wr"] & h["rd"], 1))
            sread = {t for t in ops[1:] if re.fullmatch(r"s\d+|vcc|s\[\d+:\d+\]", t)}
            n = max(n, dist_needed(lambda p: p["valu"] and p["swr"] & sread, 2))
        elif h["wr"]:
            n = max(n, dist_needed(lambda p: p["store"] and p["data"] & h["wr"], 1))
        if mn.startswith("buffer_") and s.endswith(" lds"):
            n = max(n, dist_needed(lambda p: p["mn"].startswith("s_") and p.get("m0"), 1))
        if mn.startswith("s_") and ops and ops[0] == "m0":
            h["m0"] = True
        if n:
            out.append(f"s_nop {n-1}")
            hist.append(dict(mn="s_nop", w=n, wr=set(), rd=set(), mf=False, valu=False, c=set(), swr=set(), store=False))
        out.append(ln)
        hist.append(h)
        hist = hist[-24:]
    return out

def pack(lines):
    out, i = [], 0
    while i < len(lines):
        a = lines[i].replace(",", "").split()
        b = lines[i + 1].replace(",", "").split() if i + 1 < len(lines) else []
        if a[0] in ("v_add_f32", "v_mul_f32", "v_fma_f32") and b and a[0] == b[0]:
            ops, hi, ok = [], [], True
            for x, y in zip(a[1:], b[1:]):
                if re.fullmatch(r"v\d+", x) and y == f"v{int(x[1:])+1}" and int(x[1:]) % 2 == 0:
                    ops.append(f"v[{x[1:]}:{y[1:]}]"); hi.append(1)
                elif x == y and re.fullmatch(r"s\d+", x) and int(x[1:]) % 2 == 0:
                    ops.append(f"s[{x[1:]}:{int(x[1:])+1}]"); hi.append(0)
                elif x == y and x in ("1.0", "-2.0"):
                    ops.append(x); hi.append(0)
                else:
                    ok = False
            if ok:
                sel = "" if all(hi) else " op_sel_hi:[" + ",".join(map(str, hi[1:])) + "]"
                out.append(f"v_pk_{a[0][2:]} " + ", ".join(ops) + sel)
                i += 2
                continue
        out.append(lines[i]); i += 1
    return out

def gen_main(name, o):
    L = []
    A = L.append
    NR = o.NR
    ACC = 0
    VA = 32
    VB = 38
    VXS = 40
    VWS = 45
    VO = 49
    VE = 51
    VFL = 52
    VFP = 53
    VEP = 54
    VFV = 55
    VPF = 80
    VPD = 57
    LANE = 58
    VIN = 60
    VT = 72
    VPOOL = 96
    nvp = (256 - VPOOL) // 4
    pool = [f"v[{VPOOL+4*i}:{VPOOL+4*i+3}]" for i in range(nvp)] + [f"a[{4*i}:{4*i+3}]" for i in range(o.nacc)]
    NV = 256 + 4 * o.nacc
    SX, SW, SO, SWS = 8, 12, 16, 20
    sWave, sSig, sXb, sXl, sT, sT2 = 24, 25, 26, 27, 28, 29
    sSend, sRecv = 30, 33
    sRec = 36
    sC1, sA1, sA2, sBad = 4, 6, 38, 40
    sMask = 44
    sSpin = 46
    sW3 = 37
    sP1 = 47
    sTap = 48
    STAMP = 64
    nst = [0]
    def stamp_txt():
        if not o.stamps: return []
        r = STAMP + 2 * nst[0]; nst[0] += 1
        return [f"{'s_memrealtime' if o.rt else 's_memtime'} s[{r}:{r+1}]"]
    def stamp():
        for t in stamp_txt(): A(t)

    own = [3, 7]
    M = []
    nd = o.nd
    for c in range(3):
        i0 = 0
        for T in o.groups[c]:
            z_ = 0
            for r in range(8):
                taps = [i for i in range(i0, i0 + T) if not (r in own and 15 * c + i >= nd)]
                if not taps: continue
                for i in (taps[::-1] if o.zig and z_ & 1 else taps): M.append((c, i, r))
                z_ += 1
            i0 += T
        assert i0 == 15
    assert nd <= 45
    pair_done = {}
    i0 = 0
    for T in o.groups[3][:-1]:
        for r in [0, 4, 2, 6, 1, 5]:
            for i in range(i0, i0 + T):
                M.append((3, i, r))
        i0 += T
    for a in (0, 2, 1):
        for r in (a, a + 4):
            for i in (range(14, i0 - 1, -1) if o.zig and r >= 4 else range(i0, 15)):
                M.append((3, i, r))
        pair_done[a] = len(M) - 1
    ph2 = len(M)
    dchunks = [c for c in (3, 2, 1, 0) if 15 * c + 14 >= nd]
    if len(dchunks) > 2 and nd % 15:
        dchunks[-1], dchunks[-2] = dchunks[-2], dchunks[-1]
    for c in dchunks:
        for r in own:
            for i in (range(14, -1, -1) if o.zig and r >= 4 else range(15)):
                if 15 * c + i >= nd: M.append((c, i, r))
    NM = len(M)
    assert NM == 480 and len(set(M)) == 480
    last_of = {r: max(k for k, m in enumerate(M) if m[2] == r) for r in range(8)}
    first_of = {r: min(k for k, m in enumerate(M) if m[2] == r) for r in range(8)}

    inst = {}
    use = []
    for k, (c, i, r) in enumerate(M):
        wk = ("w", 15 * c + i)
        xk = ("x", c, r + i, 1 if (k >= ph2 and c < 4 - o.keep) else 0)
        for key in (wk, xk):
            d = inst.setdefault(key, dict(first=k, last=k))
            d["last"] = k
        use.append((wk, xk))
    order = sorted(inst, key=lambda key: (inst[key]["first"], key[0] == "w"))
    reads = []
    for key in order:
        reads += [(key, 0)] if key[0] == "x" else [(key, 0), (key, 1)]
    pubs = []
    n0 = 0
    for T in o.pub:
        pubs.append([("w", n) for n in range(n0, n0 + T)])
        n0 += T
    assert n0 == 60
    pubs[0].append(("x", 0))
    src_of = lambda key: ("w", key[1]) if key[0] == "w" else ("x", key[1] >> 1)
    first_read = {}
    last_read = {}
    for t, (key, half) in enumerate(reads):
        first_read.setdefault(src_of(key), t)
        last_read[src_of(key)] = t
    tpub = [min(first_read[d] for d in g) for g in pubs]
    gi = max(i for i, t in enumerate(tpub) if t <= first_read[("x", 1)])
    pubs[gi].append(("x", 1))
    pub_at = {tpub[i]: pubs[i] for i in range(len(pubs))}
    dmas = [("x", 0, z) for z in range(5)]
    for n in range(60):
        dmas.append(("w", n))
        if o.xblk >= 0:
            if n == o.xblk: dmas += [("x", 1, z) for z in range(5)]
        elif o.x1at <= n < o.x1at + 5 * o.x1step and (n - o.x1at) % o.x1step == 0:
            dmas.append(("x", 1, (n - o.x1at) // o.x1step))
    excl = {}
    def reserve(k, tag):
        while k in excl: k += 1
        excl[k] = tag
        return k
    for it in (o.pfs.split(",") if o.pfs else []):
        p_, kind = it.split(":")
        if int(p_) >= 0: reserve(int(p_), ("pf", kind))
    kk = o.d0
    nd_ = 0
    for d in dmas[o.NP:]:
        g = int(kk + 0.5)
        while g in excl or g - 1 in excl: g += 1
        excl[g] = ("dma", d)
        nd_ += 1
        kk += o.pace0 if nd_ < o.n0 else o.pace
        if nd_ == o.n0: kk += o.pause
    klast = g
    kp = o.kpoison if o.kpoison > 0 else klast + 2
    reserve(kp, "E")
    for a in range(3): reserve(kp + 2 + o.pz * a, ("poison", a))
    reserve(o.kflag, "flag"); reserve(o.kpoll, "poll"); reserve(o.kpoll2, "poll2")
    if o.touch: reserve(kp + 1, "touch")
    pos = [0] * len(reads)
    bpos = {}
    nxt = NM
    for t in range(len(reads) - 1, -1, -1):
        p = min(inst[reads[t][0]]["first"] - o.margin, nxt - 1, o.rcap)
        while p in excl: p -= 1
        pos[t] = p
        nxt = p
        if t in pub_at:
            p -= 1
            while p in excl or p - 1 in excl: p -= 1
            bpos[t] = p
            nxt = p
    prev = -1
    for t in range(len(reads)):
        if inst[reads[t][0]]["first"] < 8 and t < 10:
            pos[t] = -1
            continue
        if t in pub_at:
            p = max(bpos[t], prev + 1)
            while p in excl: p += 1
            bpos[t] = prev = p
        p = max(pos[t], prev + 1)
        while p in excl: p += 1
        pos[t] = prev = p
        assert pos[t] < inst[reads[t][0]]["first"], (t, reads[t], pos[t])
    for t in pub_at:
        if pos[t] >= 0: excl[bpos[t]] = ("bar", t)
    free = [(-10**9, s) for s in pool]
    for t, (key, half) in enumerate(reads):
        if half == 0:
            free.sort()
            assert free[0][0] + 1 <= pos[t], ("out of fragment registers", key, pos[t], free[0])
            _, s = free.pop(0)
            inst[key]["reg"] = s
            free.append((inst[key]["last"], s))

    vmq, lq = [], []
    state = dict(vm_done=-1, lg_done=-1, bar_lg=-1)
    def vm_wait_txt(labels):
        if o.nohs: labels = [l for l in labels if not (l in ("E", "flag", "poll", "poll2") or l[0] == "poison")]
        if not labels: return []
        idx = max(i for i, l in enumerate(vmq) if l in labels)
        for l in labels: assert vmq.count(l) == (5 if l[0] == "x" else 1), l
        if idx <= state["vm_done"]: return []
        state["vm_done"] = idx
        n = len(vmq) - 1 - idx
        assert n <= 63
        return [f"s_waitcnt vmcnt({n})"]
    published = set()
    def emit_pub(t, lg=None):
        n = 1
        w = vm_wait_txt(pub_at[t])
        if lg is not None:
            w = [(w[0] + " " if w else "s_waitcnt ") + f"lgkmcnt({lg})"]
        for x in w: A(x); n += 1
        A("s_barrier")
        state["bar_lg"] = state["lg_done"]
        published.add(t)
        if t == 0: stamp()
        return n
    def emit_read(t, gap):
        key, half = reads[t]
        n = 0
        if t in pub_at and t not in published:
            n += emit_pub(t)
        reg = inst[key]["reg"]
        if key[0] == "x":
            _, c, j, _ = key
            va = VA + 2 * (j >> 3) + (c & 1)
            A(f"ds_read_b128 {reg}, v{va} offset:{(c >> 1)*XPART + (j & 3)*XWV + ((j >> 2) & 1)*XCLS}")
        else:
            slot = key[1] % NR
            m = re.fullmatch(r"([va])\[(\d+):\d+\]", reg)
            b = int(m.group(2)) + 2 * half
            so_ = ((slot % 15) // 3) * 12288 + (slot % 3) * 1024 if o.m3 else (slot % 15) * 4096
            A(f"ds_read_b64_tr_b16 {m.group(1)}[{b}:{b+1}], v{VB + (slot >= 15)} offset:{so_ + half*512}")
        lq.append((key, gap))
        return n + 1
    def lg_wait(keys, k, emit=True):
        idx = max(i for i, l in enumerate(lq) if l[0] in keys)
        if idx <= state["lg_done"]: return 0 if emit else None
        old = [i for i, l in enumerate(lq) if l[1] <= k - o.lat]
        if old: idx = max(idx, old[-1])
        n = len(lq) - 1 - idx
        if n > 15:
            n = 15; idx = len(lq) - 1 - 15
        state["lg_done"] = idx
        if not emit: return n
        A(f"s_waitcnt lgkmcnt({n})")
        return 1
    def dma_txt(d):
        if d[0] == "x":
            _, p, z = d
            so = "0" if p == 0 else f"s{sP1}"
            return [f"s_add_u32 m0, s{sXb}, {p*XPART + z*1024}",
                    f"buffer_load_dwordx4 v{VXS+z}, s[{SX}:{SX+3}], {so} offen {o.xflags} lds"]
        c, i = divmod(d[1], 15)
        so = "0" if i == 0 else f"s{sTap+i}"
        if o.m3:
            return [f"s_add_u32 m0, s{sW3}, {RING0 + ((d[1] % NR) // 3)*12288}",
                    f"buffer_load_dwordx4 v{VWS+c}, s[{SW}:{SW+3}], {so} offen offset:{(i % 3)*1024} {o.wflags} lds"]
        return [f"s_add_u32 m0, s{sXl}, {RING0 + (d[1] % NR)*4096}",
                f"buffer_load_dwordx4 v{VWS+c}, s[{SW}:{SW+3}], {so} offen {o.wflags} lds"]
    def dma_ok(d):
        if d[0] == "w" and d[1] >= NR:
            t = last_read[("w", d[1] - NR)]
            return t < len(lq) and t <= state["bar_lg"]
        return True
    pfl = []
    for it in (o.pfs.split(",") if o.pfs else []):
        p_, kind = it.split(":")
        pfl.append((int(p_), kind))
    def pf_txt(kind):
        vmq.append(("pf", kind))
        r = VPF + [k_ for _, k_ in pfl].index(kind)
        srd = SX if kind == "x" else SW
        return [f"buffer_load_dword v{VPD}, v{r}, s[{srd}:{srd+3}], 0 offen {o.pfflags}"]

    t0, t1, t2, t3, t4, t5 = VT, VT + 1, VT + 2, VT + 3, VT + 4, VT + 5
    if o.map == 0:
        bKh, bTau, bMt, bPar, bBat = 2, 3, 4, 6, 7
    elif o.map == 1:
        bKh, bTau, bMt, bPar, bBat = 4, 3, 5, 7, 2
    else:
        bKh, bTau, bMt, bPar, bBat = 1, 0, 4, 6, 7
    sKh, sJ, sU, sBat, sSl, sX0 = 38, 40, 42, 63, 48, 46
    A(f".globl {name}")
    if o.align: A(".p2align 12")
    A(".p2align 8")
    A(f".type {name},@function")
    A(f"{name}:")
    stamp()
    if o.stamps: A("s_memrealtime s[96:97]")
    if o.diag: A("s_memrealtime s[94:95]")
    A("s_load_dwordx4 s[4:7], s[0:1], 0")
    A(f"s_load_dwordx2 s[{SO}:{SO+1}], s[0:1], 16")
    A(f"s_load_dwordx2 s[{SWS}:{SWS+1}], s[0:1], 32")
    A("s_cmp_ge_u32 s2, 256")
    A("s_cbranch_scc1 L_end")
    if o.bx: A(f"s_xor_b32 s2, s2, {o.bx}")
    if o.kprobe == 1:
        A("s_waitcnt lgkmcnt(0)")
        stamp()
    A(f"v_lshrrev_b32 v{t5}, 6, v0")
    A(f"v_and_b32 v{LANE}, 63, v0")
    A(f"v_readfirstlane_b32 s{sWave}, v{t5}")
    if o.codepf:
        A("s_getpc_b64 s[30:31]")
        if o.cshare:
            A("s_lshr_b32 s3, s2, 3")
            A(f"v_lshl_add_u32 v{t0}, s3, 2, v{t5}")
            A(f"v_min_u32 v{t0}, {o.codepf - 1}, v{t0}")
        else:
            A(f"v_min_u32 v{t0}, {o.codepf - 1}, v0")
        A(f"v_lshlrev_b32 v{t0}, 7, v{t0}")
        A(f"v_mov_b32 v{t1}, s31")
        A(f"v_add_co_u32 v{t0}, vcc, s30, v{t0}")
        A(f"s_bfe_u32 s{sKh}, s2, {0x10000 + bKh}")
        A(f"s_bfe_u32 s61, s2, {0x10000 + bTau}")
        A(f"v_addc_co_u32 v{t1}, vcc, 0, v{t1}, vcc")
        A(f"global_load_dword v{VPD}, v[{t0}:{t1}], off")
        vmq.append("code")
    else:
        A(f"s_bfe_u32 s{sKh}, s2, {0x10000 + bKh}")
        A(f"s_bfe_u32 s61, s2, {0x10000 + bTau}")
    A(f"s_lshl1_add_u32 s{sSig}, s{sKh}, s61")
    A(f"s_bfe_u32 s{sU}, s2, {0x20000 + bMt}")
    A(f"s_mul_i32 s{sU}, s{sU}, 125")
    A(f"s_sub_u32 s{sU}, s{sU}, s{sSig}")
    A(f"s_bfe_u32 s3, s2, {0x10000 + bPar}")
    A(f"s_lshl1_add_u32 s{sU}, s{sU}, s3")
    A(f"s_lshl_b32 s{sU}, s{sU}, 9")
    A(f"s_bfe_u32 s{sBat}, s2, {0x10000 + bBat}")
    A(f"s_mul_i32 s{sBat}, s{sBat}, 512000")
    A(f"s_lshl_b32 s{sXl}, s{sWave}, 10")
    A(f"s_lshl_b32 s3, s{sKh}, 8")
    A(f"s_add_u32 s3, s3, s{sU}")
    A(f"s_add_u32 s3, s3, s{sXl}")
    A(f"s_sub_u32 s{sX0}, s3, 14336")
    A(f"v_lshrrev_b32 v{t0}, 3, v{LANE}")
    A(f"v_and_b32 v{t4}, 7, v0")
    A(f"v_and_b32 v{t1}, 6, v{t0}")
    A(f"v_xor_b32 v{t1}, v{t1}, v{t4}")
    A(f"v_lshl_add_u32 v{t1}, v{t1}, 4, s{sX0}")
    A(f"v_lshl_add_u32 v{VXS}, v{t0}, 13, v{t1}")
    A(f"v_add_u32 v{t2}, 6, v{t0}")
    A(f"v_and_b32 v{t1}, 6, v{t2}")
    A(f"v_xor_b32 v{t1}, v{t1}, v{t4}")
    A(f"s_add_u32 s3, s{sX0}, 4096")
    A(f"v_lshl_add_u32 v{t1}, v{t1}, 4, s3")
    A(f"v_lshl_add_u32 v{VXS+3}, v{t2}, 13, v{t1}")
    A(f"v_cmp_gt_u32 vcc, 2, v{t0}")
    A(f"v_add_u32 v{t1}, 0x20000, v{VXS}")
    A(f"v_add_u32 v{t2}, 0xffff0000, v{VXS+3}")
    A(f"v_cndmask_b32 v{VXS+2}, v{t2}, v{t1}, vcc")
    A(f"v_add_u32 v{VXS+1}, 0x10000, v{VXS}")
    A(f"s_mul_i32 s{sXb}, s{sWave}, {XWV}")
    if o.m3: A(f"s_mul_i32 s{sW3}, s{sWave}, 3072")
    A(f"s_lshl_b32 s{sSl}, s{sKh}, 8")
    A(f"s_add_u32 s{sSl}, s{sSl}, s61")
    if o.map == 3:
        A("s_bfe_u32 s3, s2, 0x10002")
        A(f"s_bfe_u32 s{sJ}, s2, 0x10003")
        A(f"s_lshl1_add_u32 s{sJ}, s3, s{sJ}")
    else:
        A(f"s_and_b32 s{sJ}, s2, 3" if o.map != 2 else f"s_bfe_u32 s{sJ}, s2, 0x20002")
    A(f"s_lshl2_add_u32 s{sSl}, s{sSl}, s{sJ}")
    A(f"s_lshl_b32 s{sSl}, s{sSl}, 7")
    A(f"s_lshl_b32 s3, s{sWave}, 13")
    A(f"s_add_u32 s{sSl}, s{sSl}, s3")
    A(f"s_and_b32 s3, s{sWave}, 1")
    A("s_lshl_b32 s3, s3, 2")
    A(f"v_and_or_b32 v{t1}, v{t0}, 2, s3")
    A(f"v_xor_b32 v{t1}, v{t1}, v{t4}")
    A(f"v_lshl_add_u32 v{t1}, v{t1}, 4, s{sSl}")
    A(f"v_lshl_add_u32 v{VWS}, v{t0}, 10, v{t1}")
    A(f"s_mov_b32 s{SX+2}, 512000")
    A(f"s_mov_b32 s{SX+3}, 0x20000")
    A(f"s_mov_b32 s{SW+2}, 3932160")
    A(f"s_mov_b32 s{SW+3}, 0x20000")
    mid = []
    B = mid.append
    B(f"v_cmp_gt_u32 vcc, 4, v{t0}")
    B(f"v_add_u32 v{VXS+4}, 0x10000, v{VXS+3}")
    B(f"v_mov_b32 v{t5}, {OOB}")
    B(f"v_cndmask_b32 v{VXS+4}, v{t5}, v{VXS+4}, vcc")
    assert o.map != 1 and len(pfl) <= 4
    for n_, (p_, kind) in enumerate(pfl):
        r = VPF + n_
        if kind[0] == "w":
            c0, nc = int(kind[1]), len(kind) - 1
            if n_ == 0:
                B(f"s_lshr_b32 s{sT}, s2, {bMt}")
                B(f"s_lshl_b32 s{sT}, s{sT}, 18")
                B(f"s_add_u32 s{sT}, s{sT}, s{sSl}")
                if o.pfpair:
                    B(f"s_bfe_u32 s{sT2}, s2, 0x10003")
                    B(f"s_mul_i32 s{sT2}, s{sT2}, {4096 - 128}")
                    B(f"s_add_u32 s{sT}, s{sT}, s{sT2}")
                    B(f"v_and_b32 v{t3}, 1, v{t4}")
                    B(f"v_lshl_add_u32 v{t3}, v{t3}, 7, s{sT}")
                    B(f"v_lshrrev_b32 v{t2}, 1, v{t4}")
                    B(f"v_lshl_add_u32 v{t3}, v{t2}, 10, v{t3}")
                else:
                    B(f"v_lshl_add_u32 v{t3}, v{t4}, 10, s{sT}")
                B(f"v_lshl_add_u32 v{t3}, v{t0}, 15, v{t3}")
            B(f"v_cmp_gt_u32 vcc, {nc}, v{t0}")
            B(f"v_add_u32 v{r}, {c0*32768}, v{t3}")
            B(f"s_nop 0")
            B(f"v_cndmask_b32 v{r}, v{t5}, v{r}, vcc")
        else:
            B(f"s_bfe_u32 s{sT2}, s2, {0x10000 + (3 if o.map >= 2 else bTau)}")
            B(f"s_lshl_b32 s{sT2}, s{sT2}, 12")
            B(f"s_add_u32 s{sT2}, s{sT2}, s{sX0}")
            B(f"v_cmp_gt_u32 vcc, 18, v{LANE}")
            B(f"v_lshl_add_u32 v{r}, v{LANE}, 13, s{sT2}")
            B(f"v_add_u32 v{r}, 128, v{r}")
            B(f"v_cndmask_b32 v{r}, v{t5}, v{r}, vcc")
    npfmid = len(mid)
    for i in range(1, 15): B(f"s_mov_b32 s{sTap+i}, {i*262144 - ((i % 3)*1024 if o.m3 else 0)}")
    B(f"v_and_b32 v{t0}, 15, v{LANE}")
    B(f"v_lshrrev_b32 v{t1}, 4, v{LANE}")
    for d in range(3):
        if d: B(f"v_add_u32 v{t2}, {d}, v{t0}")
        md = t2 if d else t0
        B(f"v_and_b32 v{t3}, 6, v{md}")
        B(f"v_xor_b32 v{t3}, v{t3}, v{t1}")
        B(f"v_lshlrev_b32 v{t3}, 4, v{t3}")
        B(f"v_lshl_add_u32 v{VA+2*d}, v{md}, 7, v{t3}")
    B(f"v_lshrrev_b32 v{t2}, 2, v{t0}")
    if o.m3: B(f"v_mad_u32_u24 v{t2}, v{t1}, 24, v{t2}")
    else: B(f"v_lshl_add_u32 v{t2}, v{t1}, 3, v{t2}")
    B(f"v_bfe_u32 v{t3}, v{LANE}, 3, 2")
    B(f"v_xor_b32 v{t3}, s{sWave}, v{t3}")
    B(f"v_lshlrev_b32 v{t3}, 5, v{t3}")
    B(f"v_lshl_add_u32 v{t3}, v{t2}, 7, v{t3}")
    B(f"v_and_b32 v{t2}, 3, v{LANE}")
    B(f"v_lshl_add_u32 v{t3}, v{t2}, 3, v{t3}")
    B(f"v_add_u32 v{VB}, {RING0}, v{t3}")
    B(f"v_add_u32 v{VB+1}, {RING0 + 15*4096}, v{t3}")
    for d in range(3): B(f"v_xor_b32 v{VA+2*d+1}, 64, v{VA+2*d}")
    for c in range(1, 4): B(f"v_add_u32 v{VWS+c}, {c*32768}, v{VWS}")
    B(f"s_movk_i32 s{sP1}, 128")
    late = []
    B = late.append
    B([f"s_add_u32 s{SO}, s{SO}, s{sBat}", f"s_addc_u32 s{SO+1}, s{SO+1}, 0"])
    B(f"s_mov_b32 s{SO+2}, 512000")
    B(f"s_mov_b32 s{SO+3}, 0x20000")
    B(f"s_mov_b32 s{SWS+2}, 0x2000000")
    B(f"s_mov_b32 s{SWS+3}, 0x20000")
    B(f"s_lshr_b32 s3, s2, {bMt}")
    if o.map != 1:
        B(f"s_lshl2_add_u32 s3, s3, s{sJ}")
    else:
        B("s_and_b32 s4, s2, 7")
        B("s_lshl3_add_u32 s3, s3, s4")
    B(f"s_lshl2_add_u32 s4, s3, s{sWave}")
    B("s_mul_i32 s4, s4, 640")
    B(f"s_add_u32 s{sRec}, s4, {(3 << 20) + 4096}")
    B("s_lshl_b32 s3, s3, 14")
    B(f"s_add_u32 s3, s3, s{sXl}")
    B(f"s_lshl_b32 s5, s{sSig}, 12")
    B("s_add_u32 s5, s5, s3")
    for a in range(3):
        B(f"s_sub_u32 s4, s{sSig}, {a+1}")
        B("s_and_b32 s4, s4, 3")
        B("s_lshl_b32 s4, s4, 12")
        B(f"s_add_u32 s{sSend+a}, s4, s3")
        B([f"s_cmp_le_u32 s{sSig}, {2-a}", "s_cselect_b32 s4, 8, 0"])
        B(f"s_add_u32 s{sRecv+a}, s5, s4")
        if a < 2:
            B("s_add_u32 s3, s3, 0x100000")
            B("s_add_u32 s5, s5, 0x100000")
    B(f"v_lshlrev_b32 v{VE}, 4, v{LANE}")
    for q in range(4): B(f"v_mov_b32 v{VIN+q}, -1")
    B(f"v_mov_b32 v{VEP}, 0")
    B(f"v_mov_b32 v{t3}, {OOB}")
    B(f"s_lshl_b32 s4, s{sSig}, 7")
    B(f"v_add_u32 v{t2}, s4, v{VE}")
    B(f"v_cmp_gt_u32 vcc, 8, v{LANE}")
    B(f"v_and_b32 v{VFP}, 3, v{LANE}")
    B(f"v_lshlrev_b32 v{VFP}, 7, v{VFP}")
    B(f"v_cndmask_b32 v{VFL}, v{t3}, v{t2}, vcc")
    B(f"v_mov_b32 v{VEP+1}, 0")
    B(f"v_mov_b32 v{VEP+2}, 0")
    B(f"s_lshl2_add_u32 s3, s{sJ}, s{sWave}")
    B("s_lshl_b32 s3, s3, 5")
    B(f"s_add_u32 s3, s3, s{sU}")
    B("s_add_u32 s3, s3, 3072")
    B(f"v_lshl_add_u32 v{t2}, v{t1}, 3, s3")
    B(f"v_lshl_add_u32 v{VO}, v{t0}, 13, v{t2}")
    B([f"s_cmp_eq_u32 s{sSig}, 3", "s_cselect_b32 s3, 16, 15"])
    B([f"s_cmp_eq_u32 s{sSig}, 3", f"s_cselect_b32 s{sMask+1}, -1, 0x7fffffff"])
    B(f"v_cmp_gt_u32 vcc, s3, v{t0}")
    B(f"v_add_u32 v{VO+1}, 4096, v{VO}")
    B(f"s_mov_b32 s{sMask}, -1")
    B(f"v_cndmask_b32 v{VO+1}, v{t3}, v{VO+1}, vcc")
    B(f"s_mov_b32 s3, 0x4038aa3b")
    B([f"s_bitcmp1_b32 s{sSig}, 0", f"s_cselect_b32 s{sC1}, 0xbfb8aa3b, s3"])
    B([f"s_bitcmp1_b32 s{sSig}, 0", f"s_cselect_b32 s{sA1}, 0, 1.0"])
    B([f"s_bitcmp1_b32 s{sSig}, 0", f"s_cselect_b32 s{sA2}, 1.0, 0"])
    if o.stamps: B("s_mov_b32 s43, 0")
    di = 0
    pfq = list(pfl)
    nmid0 = len(mid)
    for _ in range(min(o.premid, len(mid))): A(mid.pop(0))
    t_ = dma_txt(dmas[0])[0]
    A(t_); state["m0"] = t_
    if o.kprobe == 2: stamp()
    A("s_waitcnt lgkmcnt(0)")
    stamp()
    A(f"s_add_u32 s{SX}, s4, s{sBat}")
    A(f"s_addc_u32 s{SX+1}, s5, 0")
    A(f"s_mov_b32 s{SW}, s6")
    A(f"s_mov_b32 s{SW+1}, s7")
    if o.latemix:
        for it in late: mid += [it] if isinstance(it, str) else ["\n".join(it)]
        nmid0 += len(late)
        late = []
    if o.pfonly:
        for x in mid[:npfmid]: A(x)
        for _, kind in pfl:
            for x in pf_txt(kind): A(x)
        A("s_waitcnt vmcnt(0)")
        A("s_endpgm")
    while di < o.NP:
        while pfq and pfq[0][0] <= di - 1000:
            while nmid0 - len(mid) < npfmid: A(mid.pop(0))
            for x in pf_txt(pfq.pop(0)[1]): A(x)
        tx = dma_txt(dmas[di])
        if dmas[di][0] == "w" and dmas[di][1] > 0:
            while nmid0 - len(mid) < npfmid + dmas[di][1]: A(mid.pop(0))
        if tx[0] != state.get("m0"):
            A(tx[0]); state["m0"] = tx[0]
            if mid: A(mid.pop(0))
        A(tx[1])
        vmq.append(dmas[di][:2]); di += 1
        if di in o.pstat: stamp()
        for _ in range(o.midn if di < o.NPa else len(mid)):
            if mid: A(mid.pop(0))
        if di == max(o.NPa, o.lateat) and o.latepro:
            for it in late:
                for x in ([it] if isinstance(it, str) else it): A(x)
            late = []
        if di == o.itat and o.itouch:
            A("s_mov_b64 exec, 0")
            if o.partouch:
                for n_ in range(1, o.itouch + 1):
                    A(f"s_cmp_eq_u32 s{sWave}, {n_}")
                    A(f"s_cbranch_scc1 L_touch{n_}")
            A("s_branch L_touch0")
            A("L_touched:")
            A("s_mov_b64 exec, -1")
    assert not mid
    while pfq and pfq[0][0] < 0:
        for x in pf_txt(pfq.pop(0)[1]): A(x)

    side = []
    hq = []
    slow = []
    def vm(txt, label):
        def f():
            if o.nohs and (label in ("E", "flag", "poll", "poll2") or label[0] == "poison"): return []
            vmq.append(label); return [txt]
        f.vm = True
        return f
    def wait(labels):
        return lambda: vm_wait_txt(labels)
    ws = f"s[{SWS}:{SWS+3}]"
    side.append((-1, [it if isinstance(it, str) else (lambda it=it: it) for it in late]))
    fixed = {}
    fixed["E"] = vm(f"buffer_load_dword v{VEP}, v{VEP}, {ws}, s{sRec} offen sc1", "E")
    for a in range(3):
        fixed[("poison", a)] = vm(f"buffer_store_dwordx4 v[{VIN}:{VIN+3}], v{VE}, {ws}, s{sSend+a} offen sc1", ("poison", a))
    side.append((o.kflag - 12, [wait(["E"]), f"v_add_u32 v{VEP}, {0 if o.nohs else EPC}, v{VEP}", lambda: state.update(ep=1) or []]))
    def flag():
        assert state.get("ep")
        return vm_wait_txt([("poison", 2)]) + vm(f"buffer_store_dwordx4 v[{VEP}:{VEP+3}], v{VFL}, {ws}, s{sRec} offen offset:128 sc1", "flag")()
    fixed["flag"] = flag
    fixed["poll"] = vm(f"buffer_load_dword v{VFV}, v{VFP}, {ws}, s{sRec} offen offset:128 sc1", "poll")
    for _, kind in pfq: fixed[("pf", kind)] = (lambda kind=kind: pf_txt(kind))
    ld_flag = lambda r: f"buffer_load_dword v{r}, v{VFP}, {ws}, s{sRec} offen offset:128 sc1"
    ld_in = lambda a: f"buffer_load_dwordx4 v[{VIN+4*a}:{VIN+4*a+3}], v{VE}, {ws}, s{sRecv+a} offen sc1"
    fixed["poll2"] = vm(ld_flag(VFV + 1), "poll2")
    fixed["touch"] = vm(f"buffer_load_dword v{VPD}, v{VO}, s[{SO}:{SO+3}], 0 offen", "touch")
    spin = lambda inc: ([f"s_add_u32 s43, s43, {inc}"] if o.stamps else []) + [
        f"s_add_u32 s{sSpin}, s{sSpin}, 1", f"s_cmp_gt_u32 s{sSpin}, {o.spin}", "s_cbranch_scc1 L_end"]
    side.append((o.kcheck, [f"s_mov_b32 s{sSpin}, 0", wait(["poll"]),
                            lambda: state.update(flagok=1) or [f"v_cmp_ne_u32 s[{sBad}:{sBad+1}], v{VFV}, v{VEP}"]]))
    def send(a):
        b0, b1 = ACC + 4 * a, ACC + 4 * (a + 4)
        p = []
        for q in range(4): p.append(f"v_mul_f32 v{b0+q}, s{sC1}, v{b0+q}")
        p.append(f"v_cvt_pk_bf16_f32 v{b0}, v{b0}, v{b0+1}")
        p.append(f"v_cvt_pk_bf16_f32 v{b0+1}, v{b0+2}, v{b0+3}")
        for q in range(2): p.append(f"v_min_u32 v{b0+q}, -2, v{b0+q}")
        side.append((last_of[a], ["s_nop 1"] * 3 + p))
        p = []
        for q in range(4): p.append(f"v_mul_f32 v{b1+q}, s{sC1}, v{b1+q}")
        p.append(f"v_cvt_pk_bf16_f32 v{b0+2}, v{b1}, v{b1+1}")
        p.append(f"v_cvt_pk_bf16_f32 v{b0+3}, v{b1+2}, v{b1+3}")
        for q in range(2, 4): p.append(f"v_min_u32 v{b0+q}, -2, v{b0+q}")
        p.append(vm(f"buffer_store_dwordx4 v[{b0}:{b0+3}], v{VE}, {ws}, s{sSend+a} offen sc1", ("send", a)))
        side.append((last_of[a + 4], ["s_nop 1"] * 3 + p))
    def recv(a, k):
        hq.append((k, vm(ld_in(a), ("recv", a))))
    def chk(a, x, prev=None):
        r0 = VIN + 4 * a
        c = [f"v_max_u32 v{x+1}, v{r0+2}, v{r0+3}", f"v_cndmask_b32 v{x+1}, 0, v{x+1}, s[{sMask}:{sMask+1}]"]
        if prev is None:
            return c + [f"v_max3_u32 v{x}, v{x+1}, v{r0}, v{r0+1}"]
        return c + [f"v_max3_u32 v{x+1}, v{x+1}, v{r0}, v{r0+1}", f"v_max_u32 v{x}, v{x}, v{x+1}"]
    send(0); recv(0, o.kr[0])
    send(2); recv(2, o.kr[1])
    send(1); recv(1, o.kr[2])
    kb = [k_ for k_ in o.kb if k_ > 0]
    for n_, k_ in enumerate(kb): hq.append((k_, vm(ld_in(1), ("bak", n_))))
    hq.sort(key=lambda x: x[0])
    TA, TB, X = VT + 8, VT + 16, VT
    unpack = lambda a, d: [t for q in range(4) for t in
                           (f"v_lshlrev_b32 v{d+2*q}, 16, v{VIN+4*a+q}", f"v_and_b32 v{d+2*q+1}, 0xffff0000, v{VIN+4*a+q}")]
    other = unpack(2, TB)
    for q in range(8): other.append(f"v_add_f32 v{TA+q}, v{TA+q}, v{TB+q}")
    for q in range(8): other.append(f"v_exp_f32 v{TA+q}, v{TA+q}")
    for q in range(8): other.append(f"v_add_f32 v{TA+q}, 1.0, v{TA+q}")
    for q in range(8): other.append(f"v_rcp_f32 v{TA+q}, v{TA+q}")
    for q in range(8): other.append(f"v_fma_f32 v{TB+q}, v{TA+q}, -2.0, s{sA2}")
    for q in range(8): other.append(f"v_mul_f32 v{TA+q}, s{sA1}, v{TA+q}")
    eupd = vm(f"buffer_store_dword v{VEP}, v{VFL}, {ws}, s{sT2} offen {o.eflags}", "Eupd")
    side.append((o.kr[3], [wait([("recv", 0)])] + chk(0, X) + unpack(0, TA)))
    side.append((o.kr[4], [wait([("recv", 2), "poll2"])] + chk(2, X, X) + [f"v_cmp_eq_u32 vcc, -1, v{X}",
                 lambda: state.update(ochk=1, nhq=len(hq)) or [f"s_or_b64 s[{sBad}:{sBad+1}], s[{sBad}:{sBad+1}], vcc", "s_cbranch_scc1 L_again", "L_backo:"]] + ([eupd] if o.eearly else []) + other))
    slow += ["L_again:", f"v_cmp_ne_u32 vcc, v{VFV+1}, v{VEP}", "s_cbranch_vccz L_again1", ld_flag(VFV + 1)] + spin(1) + [
             "s_waitcnt vmcnt(0)", "s_branch L_again", "L_again1:", ld_in(0), ld_in(2), ld_in(1), "s_branch L_backo"]
    nlate = sum(1 for k_ in kb + [o.kr[2]] if k_ > o.kr[4] + 4)
    po = pack(unpack(0, TA) + other)
    slow += ["L_rec:", f"s_waitcnt vmcnt({1 + nlate + o.eearly})", "L_rec2:"] + chk(0, X) + chk(2, X, X) + [
             f"v_cmp_eq_u32 vcc, -1, v{X}", "s_cbranch_vccnz L_rec1", ld_in(1)] + po + ["s_waitcnt vmcnt(1)", "s_branch L_slows2" if kb else "s_branch L_slows3"]
    slow += ["L_rec1:", ld_in(0), ld_in(2)] + spin(256) + ["s_waitcnt vmcnt(0)", "s_branch L_rec2"]
    if not kb:
        slow += ["L_slows3:"] + chk(1, X) + [f"v_cmp_eq_u32 vcc, -1, v{X}", "s_cbranch_vccz L_backs", "s_waitcnt vmcnt(0)", "s_branch L_slows2"]
    slow += ["L_slows:", ld_in(1)] + spin(65536) + [f"s_waitcnt vmcnt({len(kb)})", "L_slows2:"] + chk(1, X) + [
             f"v_cmp_eq_u32 vcc, -1, v{X}", "s_cbranch_vccnz L_slows", "s_branch L_backs"]
    U = ACC + 16
    fin = [wait([("recv", 1)])] + chk(1, X) + [f"v_cmp_eq_u32 vcc, -1, v{X}", lambda: ["s_cbranch_vccnz L_slows", "L_backs:"]] + unpack(1, U)
    regs = [(ACC + 4 * r + q, 4 * h + q) for h, r in enumerate(own) for q in range(4)]
    if o.finord == 0:
        for b, e in regs: fin.append(f"v_fma_f32 v{b}, v{b}, s{sC1}, v{U+e}")
        for b, e in regs: fin.append(f"v_exp_f32 v{b}, v{b}")
        for b, e in regs: fin.append(f"v_add_f32 v{b}, 1.0, v{b}")
    else:
        up = fin[-8:]; fin = fin[:-8]
    for h, r in enumerate(own):
        b = ACC + 4 * r
        if o.finord:
            fin += up[4*h:4*h+4]
            for q in range(4): fin.append(f"v_fma_f32 v{b+q}, v{b+q}, s{sC1}, v{U+4*h+q}")
            for q in range(4): fin.append(f"v_exp_f32 v{b+q}, v{b+q}")
            for q in range(4): fin.append(f"v_add_f32 v{b+q}, 1.0, v{b+q}")
        for q in range(4): fin.append(f"v_rcp_f32 v{b+q}, v{b+q}")
        for q in range(4): fin.append(f"v_fma_f32 v{b+q}, v{b+q}, v{TB+4*h+q}, v{TA+4*h+q}")
        fin.append(f"v_cvt_pk_bf16_f32 v{b}, v{b}, v{b+1}")
        fin.append(f"v_cvt_pk_bf16_f32 v{b+1}, v{b+2}, v{b+3}")
        fin.append(vm(f"buffer_store_dwordx2 v[{b}:{b+1}], v{VO+h}, s[{SO}:{SO+3}], 0 offen {o.oflags}", ("out", h)))
    if o.tstat: fin = [stamp_txt, fin[0], stamp_txt] + fin[1:]
    side.append((10**5, fin))
    side.append((o.kcheck - 8, [lambda: [f"s_cmp_lg_u32 s{sSig}, 0", f"s_cselect_b32 s{sT2}, 0x2000000, s{sRec}"]]))
    if not o.eearly: side.append((o.keupd, [eupd]))
    side.sort(key=lambda x: x[0])
    sq = []
    for k, p in side:
        for it in p: sq.append((k, it))
    def cost(t):
        if t.endswith(":"): return 0
        return 2 if (t.split()[0] in TRANS or t == "s_nop 1") else 1

    dgaps = sorted(g for g, tag in excl.items() if tag[0] == "dma")
    def set_m0():
        t_ = dma_txt(excl[dgaps[0]][1])[0]
        if t_ == state.get("m0"): return 0
        A(t_); state["m0"] = t_
        return 1
    set_m0()
    rt = 0
    while rt < len(reads) and pos[rt] < 0:
        emit_read(rt, max(0, rt - 2)); rt += 1
    info = []
    rgaps = set(pos)
    def needs_wait(kk):
        iss = [ii for ii, l in enumerate(lq) if l[0] in use[kk]]
        return max(iss) > state["lg_done"]
    def all_issued(kk):
        return all(sum(1 for l in lq if l[0] == key) == (2 if key[0] == "w" else 1) for key in use[kk])
    for k in range(NM):
        c, i, r = M[k]
        wk, xk = use[k]
        lg_wait((wk, xk), k)
        acc = f"v[{ACC+4*r}:{ACC+4*r+3}]"
        A(f"v_mfma_f32_16x16x32_bf16 {acc}, {inst[wk]['reg']}, {inst[xk]['reg']}, {'0' if k == first_of[r] else acc}")
        used = 0
        if k in excl:
            tag = excl[k]
            if tag[0] == "dma":
                d = tag[1]
                assert d == dmas[di] and dma_ok(d), (k, d)
                tx = dma_txt(d)
                set_m0()
                A(tx[1]); vmq.append(d[:2]); di += 1
                dgaps.pop(0)
                info.append(f"{d[0]}{d[1]}@{k}")
            elif tag[0] == "bar":
                emit_pub(tag[1])
            else:
                for x in fixed[tag](): A(x)
            assert not (rt < len(reads) and pos[rt] <= k)
        else:
            while rt < len(reads) and pos[rt] <= k:
                used += emit_read(rt, k); rt += 1
            kk = k + 1
            keys = ()
            while kk < NM:
                if all_issued(kk) and needs_wait(kk): keys += use[kk]
                if kk not in excl: break
                kk += 1
            barw = k + 1 in excl and excl[k + 1][0] == "bar"
            if keys or barw: used += 1
            while used < 2:
                if dgaps and dma_txt(excl[dgaps[0]][1])[0] != state.get("m0") and (
                        used == 0 or not any(g_ not in excl and g_ not in rgaps for g_ in range(k + 1, dgaps[0]))):
                    used += set_m0()
                    continue
                if hq and hq[0][0] <= k and state.get("flagok"):
                    if used: break
                    for x in hq.pop(0)[1](): A(x)
                    used = 2
                    continue
                if sq and sq[0][0] <= k:
                    it = sq[0][1]
                    if isinstance(it, str) and cost(it) + used > 2: break
                    if not isinstance(it, str) and used and (sq[0][0] < 0 or getattr(it, "vm", False)): break
                    sq.pop(0)
                    for x in ([it] if isinstance(it, str) else it()):
                        A(x); used += cost(x)
                    if getattr(it, "vm", False): used = 2
                    continue
                break
            w = vm_wait_txt(pub_at[excl[k + 1][1]]) if barw else []
            if keys:
                n = lg_wait(keys, k + 1, False)
                w = [(w[0] + " " if w else "s_waitcnt ") + f"lgkmcnt({n})"]
            for x in w: A(x)
        if o.stamps and k in o.stat: stamp()
    assert di == len(dmas) and rt == len(reads), (di, len(dmas), rt)
    A(f"; tail: {len(sq)} side instructions left")
    if o.verbose:
        print("dma issue:", " ".join(info), file=sys.stderr)
        print("publish:", " ".join(f"{bpos[t]}:{g[0][1]}-{max(x[1] for x in g if x[0]=='w')}{'+x' if any(x[0]=='x' for x in g) else ''}" for t, g in sorted(pub_at.items())), file=sys.stderr)
        print("pair_done", pair_done, "tail", len(sq), file=sys.stderr)
    assert not hq and state.get("ochk") and state["nhq"] == nlate, (state, nlate)
    A(f"s_cmp_lg_u64 s[{sBad}:{sBad+1}], 0")
    A("s_cbranch_scc1 L_rec")
    tl = []
    while sq:
        it = sq.pop(0)[1]
        tl += [it] if isinstance(it, str) else it()
    for x in pack(tl): A(x)
    if o.stamps and o.diag:
        stamp()
        A("s_waitcnt vmcnt(0)")
        stamp()
    elif o.stamps:
        stamp()
        A("s_waitcnt vmcnt(0)")
        stamp()
        A("s_memrealtime s[98:99]")
        A("s_waitcnt lgkmcnt(0)")
        A("s_lshl_b32 s3, s2, 2")
        A(f"s_add_u32 s3, s3, s{sWave}")
        A("s_lshl_b32 s3, s3, 7")
        A("s_add_u32 s3, s3, 0x1000000")
        A("v_mov_b32 v30, s3")
        assert STAMP + 2 * nst[0] <= 94
        for b in range(1, nst[0]):
            A(f"s_sub_u32 s3, s{STAMP+2*b}, s{STAMP}")
            A("v_mov_b32 v31, s3")
            A(f"buffer_store_dword v31, v30, {ws}, 0 offen offset:{4*b}")
        A(f"s_getreg_b32 s3, hwreg(HW_REG_XCC_ID)")
        A(f"v_mov_b32 v31, s3")
        A(f"buffer_store_dword v31, v30, {ws}, 0 offen offset:{4*28}")
        A(f"v_mov_b32 v31, {nst[0] + 256*o.rt}")
        A(f"buffer_store_dword v31, v30, {ws}, 0 offen offset:0")
        A(f"v_mov_b32 v31, s43")
        A(f"buffer_store_dword v31, v30, {ws}, 0 offen offset:{4*29}")
        A("v_mov_b32 v31, s96")
        A(f"buffer_store_dword v31, v30, {ws}, 0 offen offset:{4*30}")
        A("v_mov_b32 v31, s98")
        A(f"buffer_store_dword v31, v30, {ws}, 0 offen offset:{4*31}")
    if o.diag:
        A("s_waitcnt vmcnt(0) lgkmcnt(0)")
        A("s_mov_b32 s3, 0")
        d = o.diag.split(":")
        if d[0] == "xcc":
            A("s_getreg_b32 s3, hwreg(HW_REG_XCC_ID)")
            A("s_sub_u32 s3, s3, s2")
            A("s_and_b32 s3, s3, 7")
            A("s_mul_i32 s3, s3, 500")
        if d[0] == "only":
            A("s_and_b32 s3, s2, 7")
            A(f"s_cmp_eq_u32 s3, {d[1]}")
            A("s_cselect_b32 s3, 1000, 0")
        if d[0] == "enc":
            A(f"s_sub_u32 s3, s{STAMP+2*int(d[2])}, s{STAMP+2*int(d[1])}")
            A(f"s_mul_i32 s3, s3, {d[3]}")
            A("s_min_u32 s3, s3, 20000")
            if len(d) > 4:
                A(f"s_cmp_eq_u32 s2, {d[4]}")
                A("s_cselect_b32 s3, s3, 0")
        A("s_add_u32 s3, s3, 4000")
        A("L_spin:")
        A("s_memrealtime s[4:5]")
        A("s_waitcnt lgkmcnt(0)")
        A("s_sub_u32 s6, s4, s94")
        A("s_cmp_lt_u32 s6, s3")
        A("s_cbranch_scc1 L_spin")
    A("L_end:")
    A("s_endpgm")
    L.extend(slow)
    L = [y for x in L for y in x.split("\n")]
    if o.abl:
        first = next(i for i, l in enumerate(L) if l.startswith("v_mfma"))
        end = next(i for i, l in enumerate(L) if l.startswith("; tail"))
        K = []
        for i, l in enumerate(L):
            if first < i < end:
                if "b" in o.abl and l == "s_barrier": continue
                if "d" in o.abl and l.endswith(" lds"): continue
                if "w" in o.abl and l.startswith("s_waitcnt vmcnt"):
                    l = re.sub(r"vmcnt\(\d+\)", "", l)
                    if l.strip() == "s_waitcnt": continue
                if "l" in o.abl and l.startswith("s_waitcnt lgkmcnt"): continue
                if "r" in o.abl and l.startswith("ds_read"): continue
                if "x" in o.abl and (" sc1" in l or l.startswith("s_cbranch")): continue
                if "v" in o.abl and l.startswith("v_") and not l.startswith("v_mfma") and not l.startswith("v_cmp"): continue
            if "x" in o.abl and i >= end and (l.startswith("s_cbranch_vccnz L_slows") or l.startswith("s_cbranch_scc1 L_rec")): continue
            K.append(l)
        L = K
    return fix_hazards(L), NV, RING0 + NR * 4096

def disasm(lines):
    import subprocess, tempfile
    d = tempfile.mkdtemp()
    open(d + "/a.s", "w").write('.amdgcn_target "amdgcn-amd-amdhsa--gfx950"\n.text\n' + "\n".join(lines) + "\n")
    subprocess.run(["clang", "-x", "assembler", "-target", "amdgcn-amd-amdhsa", "-mcpu=gfx950", "-c", d + "/a.s", "-o", d + "/a.o"], check=True)
    dis = subprocess.run(["llvm-objdump", "-d", "--mcpu=gfx950", d + "/a.o"], capture_output=True, text=True).stdout
    return [int(l.split("//")[1].split(":")[0], 16) for l in dis.splitlines() if "//" in l]

def add_touches(body, extra, par, entry_off=0x300):
    isins = lambda l: l.split(";")[0].strip() and not l.strip().endswith(":") and not l.startswith(".")
    n = 0
    while True:
        ad = disasm(body + [f"L_touch{z}:" for z in range(n, 5)])
        idx = [i for i, l in enumerate(body) if isins(l)]
        assert len(idx) == len(ad)
        page = 4096 * (n + 1) - entry_off
        if ad[-1] < page: break
        cand = [(i, a) for i, a in zip(idx, ad) if page <= a <= page + 56]
        best = None
        for i, a in cand:
            if body[i].startswith("v_mfma"):
                j, cnt = i - 1, 0
                while not body[j].startswith("v_mfma"):
                    cnt += 2 if (body[j].startswith("buffer") or body[j] == "s_barrier" or body[j].split()[0] in TRANS or body[j] == "s_nop 1") else 1
                    j -= 1
                if best is None or cnt < best[0]: best = (cnt, i)
        i = best[1]
        body = body[:i] + [f"L_touch{n}:", f"s_cbranch_execz {'L_touched' if par else f'L_touch{n+1}'}"] + body[i:]
        n += 1
    for lab in extra:
        i = body.index(lab + ":")
        assert body[i - 1].split()[0] in ("s_branch", "s_endpgm")
        body = body[:i] + [f"L_touch{n}:", f"s_branch {'L_touched' if par else f'L_touch{n+1}'}"] + body[i:]
        n += 1
    return [l.replace(f"L_touch{n}", "L_touched") for l in body]

def build(o):
    body, nv, lds = gen_main(KNAME, o)
    if o.itouch: body = add_touches(body, ["L_again", "L_rec1"][:o.itouch - 1], o.partouch)
    txt = HDR + f"; @launch grid=(256,1,1) block=(256,1,1) lds={lds}\n"
    txt += '.amdgcn_target "amdgcn-amd-amdhsa--gfx950"\n.text\n' + "\n".join(body) + "\n"
    if o.codepf:
        txt += ".fill 64, 4, 0xbf810000\n"
    txt += f""".section .rodata,"a"
.p2align 6
.amdhsa_kernel {KNAME}
  .amdhsa_next_free_vgpr {nv}
  .amdhsa_next_free_sgpr 102
  .amdhsa_accum_offset 256
  .amdhsa_group_segment_fixed_size 0
  .amdhsa_kernarg_size 40
  .amdhsa_user_sgpr_count 2
  .amdhsa_user_sgpr_kernarg_segment_ptr 1
  .amdhsa_system_sgpr_workgroup_id_x 1
.end_amdhsa_kernel
"""
    return txt

def opts(argv=None):
    p = argparse.ArgumentParser()
    il = lambda s: [int(x) for x in s.split(",")]
    p.add_argument("-o", default="/dev/stdout")
    p.add_argument("--NR", type=int, default=30)
    p.add_argument("--nd", type=int, default=30)
    p.add_argument("--keep", type=int, default=2)
    p.add_argument("--nacc", type=int, default=64)
    p.add_argument("--groups", type=lambda s: [il(x) for x in s.split("/")], default="1,1,1,2,2,3,5/5,5,5/7,8/15")
    p.add_argument("--pub", type=il, default="1,1,1,2,2,3,5,5,5,5,5,5,5,5,5,5")
    p.add_argument("--margin", type=int, default=7)
    p.add_argument("--lat", type=int, default=5)
    p.add_argument("--NP", type=int, default=11)
    p.add_argument("--pace", type=float, default=4.5)
    p.add_argument("--x1at", type=int, default=18)
    p.add_argument("--x1step", type=int, default=2)
    p.add_argument("--pfs", default="-994:w0,-1:w123")
    p.add_argument("--d0", type=float, default=2)
    p.add_argument("--pace0", type=float, default=4.5)
    p.add_argument("--n0", type=int, default=0)
    p.add_argument("--pause", type=float, default=0)
    p.add_argument("--kb", type=il, default="0,0,0")
    p.add_argument("--depth", type=int, default=3)
    p.add_argument("--nap", type=int, default=2)
    p.add_argument("--keupd", type=int, default=10**6)
    p.add_argument("--eflags", default="")
    p.add_argument("--pfpair", type=int, default=0)
    p.add_argument("--bx", type=int, default=0)
    p.add_argument("--pfonly", type=int, default=0)
    p.add_argument("--nohs", type=int, default=0)
    p.add_argument("--pstat", type=il, default="99")
    p.add_argument("--m3", type=int, default=0)
    p.add_argument("--xblk", type=int, default=-1)
    p.add_argument("--cshare", type=int, default=0)
    p.add_argument("--partouch", type=int, default=0)
    p.add_argument("--lateat", type=int, default=0)
    p.add_argument("--finord", type=int, default=0)
    p.add_argument("--eearly", type=int, default=0)
    p.add_argument("--tstat", type=int, default=0)
    p.add_argument("--zig", type=int, default=0)
    p.add_argument("--kprobe", type=int, default=0)
    p.add_argument("--premid", type=int, default=0)
    p.add_argument("--latemix", type=int, default=0)
    p.add_argument("--pz", type=int, default=5)
    p.add_argument("--kpoison", type=int, default=0)
    p.add_argument("--kflag", type=int, default=330)
    p.add_argument("--kpoll", type=int, default=362)
    p.add_argument("--kcheck", type=int, default=395)
    p.add_argument("--kr", type=il, default="392,418,448,432,458")
    p.add_argument("--kpoll2", type=int, default=420)
    p.add_argument("--touch", type=int, default=0)
    p.add_argument("--itouch", type=int, default=0)
    p.add_argument("--itat", type=int, default=9)
    p.add_argument("--rcap", type=int, default=480)
    p.add_argument("--NPa", type=int, default=7)
    p.add_argument("--midn", type=int, default=5)
    p.add_argument("--latepro", type=int, default=1)
    p.add_argument("--spin", type=int, default=200000)
    p.add_argument("--xflags", default="")
    p.add_argument("--wflags", default="")
    p.add_argument("--pfflags", default="")
    p.add_argument("--oflags", default="")
    p.add_argument("--stamps", type=int, default=0)
    p.add_argument("--rt", type=int, default=0)
    p.add_argument("--stat", type=il, default="119,239,359,419,479")
    p.add_argument("--align", type=int, default=1)
    p.add_argument("--verbose", type=int, default=0)
    p.add_argument("--abl", default="")
    p.add_argument("--map", type=int, default=2)
    p.add_argument("--codepf", type=int, default=-1)
    p.add_argument("--diag", default="")
    return p.parse_args(argv)

def code_lines(txt):
    import subprocess, tempfile, os
    d = tempfile.mkdtemp()
    open(d + "/a.s", "w").write(txt)
    subprocess.run(["clang", "-x", "assembler", "-target", "amdgcn-amd-amdhsa", "-mcpu=gfx950", "-c", d + "/a.s", "-o", d + "/a.o"], check=True)
    dis = subprocess.run(["llvm-objdump", "-d", "--mcpu=gfx950", d + "/a.o"], capture_output=True, text=True).stdout
    addr = lambda l: int(l.split("//")[1].split(":")[0], 16)
    ls = [l for l in dis.splitlines() if "//" in l]
    pc = next(addr(l) for l in ls if "s_getpc" in l) + 4
    end = max(addr(l) for l in ls if "s_branch L_back" in l) + 4
    return (end - pc) // 128 + 2

if __name__ == "__main__":
    o = opts()
    if o.codepf < 0:
        o.codepf = 100
        v, o.verbose = o.verbose, 0
        o.codepf = code_lines(build(o))
        o.verbose = v
    open(o.o, "w").write(build(o))
```

```python
import sys, argparse, re

KNAME = "standalone__autoregressive_conv_wavernn__speech_kernel"
HDR = """; Kernarg layout for this problem (40 bytes, ptrs only, base s[0:1]):
"""
XPART, XCLS, XWV = 20480, 2304, 5120
RING0 = 2 * XPART
OOB = 0x7ffffff0
EPC = 0x9e3779b1

def regs_of(tok):
    m = re.fullmatch(r"([va])\[(\d+):(\d+)\]", tok)
    if m:
        return {(m.group(1), i) for i in range(int(m.group(2)), int(m.group(3)) + 1)}
    m = re.fullmatch(r"-?([va])(\d+)", tok)
    if m:
        return {(m.group(1), int(m.group(2)))}
    return set()

TRANS = ("v_exp_f32", "v_rcp_f32")
def fix_hazards(lines):
    out = []
    hist = []
    def dist_needed(pred, need):
        d = 0
        for h in reversed(hist):
            if d >= need:
                return 0
            if pred(h):
                return need - d
            d += h["w"]
        return 0
    for ln in lines:
        s = ln.split(";")[0].strip()
        if not s or s.endswith(":") or s.startswith("."):
            out.append(ln)
            continue
        mn, *rest = s.split(None, 1)
        ops = [t.strip() for t in rest[0].split(",")] if rest else []
        ops = [t.split()[0] if t else t for t in ops]
        h = dict(mn=mn, w=1, wr=set(), rd=set(), mf=False, valu=False, c=set(), swr=set(), store=False)
        if mn == "s_nop":
            h["w"] = int(ops[0]) + 1
        isv = mn.startswith("v_")
        if mn.startswith("v_mfma"):
            h["mf"] = True
            h["wr"] = regs_of(ops[0]); h["rd"] = regs_of(ops[1]) | regs_of(ops[2]); h["c"] = regs_of(ops[3])
        elif isv:
            h["valu"] = True
            if mn.startswith("v_cmp") or mn.startswith("v_readfirstlane"):
                h["swr"] = {ops[0]}
                for t in ops[1:]: h["rd"] |= regs_of(t)
            else:
                h["wr"] = regs_of(ops[0])
                for t in ops[1:]: h["rd"] |= regs_of(t)
                if "_co_" in mn: h["swr"] = {"vcc"}
        elif mn.startswith("buffer_store") or mn.startswith("ds_write"):
            for t in ops: h["rd"] |= regs_of(t)
            h["store"] = mn.endswith("x4") or mn.endswith("x3")
            h["data"] = regs_of(ops[0])
        elif mn.startswith("buffer_load") or mn.startswith("global_load"):
            if s.endswith(" lds"):
                h["rd"] = regs_of(ops[0])
            else:
                h["wr"] = regs_of(ops[0]); h["rd"] = regs_of(ops[1])
        elif mn.startswith("ds_read"):
            h["wr"] = regs_of(ops[0]); h["rd"] = regs_of(ops[1])
        n = 0
        touch = h["wr"] | h["rd"]
        if h["mf"]:
            n = max(n, dist_needed(lambda p: p["valu"] and p["wr"] & (h["rd"] | h["c"]), 2))
            n = max(n, dist_needed(lambda p: p["mf"] and p["wr"] & h["rd"], 8))
            n = max(n, dist_needed(lambda p: p["mf"] and (p["wr"] & h["c"]) and p["wr"] != h["c"], 6))
        elif touch:
            n = max(n, dist_needed(lambda p: p["mf"] and p["wr"] & touch, 8))
        if h["valu"]:
            n = max(n, dist_needed(lambda p: p["mf"] and p["c"] & h["wr"], 3))
            n = max(n, dist_needed(lambda p: p["store"] and p["data"] & h["wr"], 2))
            if mn not in TRANS:
                n = max(n, dist_needed(lambda p: p["mn"] in TRANS and p["wr"] & h["rd"], 1))
            if mn.startswith("v_readfirstlane"):
                n = max(n, dist_needed(lambda p: p["valu"] and p["wr"] & h["rd"], 1))
            sread = {t for t in ops[1:] if re.fullmatch(r"s\d+|vcc|s\[\d+:\d+\]", t)}
            n = max(n, dist_needed(lambda p: p["valu"] and p["swr"] & sread, 2))
        elif h["wr"]:
            n = max(n, dist_needed(lambda p: p["store"] and p["data"] & h["wr"], 1))
        if mn.startswith("buffer_") and s.endswith(" lds"):
            n = max(n, dist_needed(lambda p: p["mn"].startswith("s_") and p.get("m0"), 1))
        if mn.startswith("s_") and ops and ops[0] == "m0":
            h["m0"] = True
        if n:
            out.append(f"s_nop {n-1}")
            hist.append(dict(mn="s_nop", w=n, wr=set(), rd=set(), mf=False, valu=False, c=set(), swr=set(), store=False))
        out.append(ln)
        hist.append(h)
        hist = hist[-24:]
    return out

def pack(lines):
    out, i = [], 0
    while i < len(lines):
        a = lines[i].replace(",", "").split()
        b = lines[i + 1].replace(",", "").split() if i + 1 < len(lines) else []
        if a[0] in ("v_add_f32", "v_mul_f32", "v_fma_f32") and b and a[0] == b[0]:
            ops, hi, ok = [], [], True
            for x, y in zip(a[1:], b[1:]):
                if re.fullmatch(r"v\d+", x) and y == f"v{int(x[1:])+1}" and int(x[1:]) % 2 == 0:
                    ops.append(f"v[{x[1:]}:{y[1:]}]"); hi.append(1)
                elif x == y and re.fullmatch(r"s\d+", x) and int(x[1:]) % 2 == 0:
                    ops.append(f"s[{x[1:]}:{int(x[1:])+1}]"); hi.append(0)
                elif x == y and x in ("1.0", "-2.0"):
                    ops.append(x); hi.append(0)
                else:
                    ok = False
            if ok:
                sel = "" if all(hi) else " op_sel_hi:[" + ",".join(map(str, hi[1:])) + "]"
                out.append(f"v_pk_{a[0][2:]} " + ", ".join(ops) + sel)
                i += 2
                continue
        out.append(lines[i]); i += 1
    return out

def gen_main(name, o):
    L = []
    A = L.append
    NR = o.NR
    ACC = 0
    VA = 32
    VB = 38
    VXS = 40
    VWS = 45
    VO = 49
    VE = 51
    VFL = 52
    VFP = 53
    VEP = 54
    VFV = 55
    VPF = 80
    VPD = 57
    LANE = 58
    VIN = 60
    VT = 72
    VPOOL = 96
    nvp = (256 - VPOOL) // 4
    pool = [f"v[{VPOOL+4*i}:{VPOOL+4*i+3}]" for i in range(nvp)] + [f"a[{4*i}:{4*i+3}]" for i in range(o.nacc)]
    NV = 256 + 4 * o.nacc
    SX, SW, SO, SWS = 8, 12, 16, 20
    sWave, sSig, sXb, sXl, sT, sT2 = 24, 25, 26, 27, 28, 29
    sSend, sRecv = 30, 33
    sRec = 36
    sC1, sA1, sA2, sBad = 4, 6, 38, 40
    sMask = 44
    sSpin = 46
    sW3 = 37
    sP1 = 47
    sTap = 48
    STAMP = 64
    nst = [0]
    def stamp_txt():
        if not o.stamps: return []
        r = STAMP + 2 * nst[0]; nst[0] += 1
        return [f"{'s_memrealtime' if o.rt else 's_memtime'} s[{r}:{r+1}]"]
    def stamp():
        for t in stamp_txt(): A(t)

    own = [3, 7]
    M = []
    nd = o.nd
    for c in range(3):
        i0 = 0
        for T in o.groups[c]:
            z_ = 0
            for r in range(8):
                taps = [i for i in range(i0, i0 + T) if not (r in own and 15 * c + i >= nd)]
                if not taps: continue
                for i in (taps[::-1] if o.zig and z_ & 1 else taps): M.append((c, i, r))
                z_ += 1
            i0 += T
        assert i0 == 15
    assert nd <= 45
    pair_done = {}
    i0 = 0
    for T in o.groups[3][:-1]:
        for r in [0, 4, 2, 6, 1, 5]:
            for i in range(i0, i0 + T):
                M.append((3, i, r))
        i0 += T
    for a in (0, 2, 1):
        for r in (a, a + 4):
            for i in (range(14, i0 - 1, -1) if o.zig and r >= 4 else range(i0, 15)):
                M.append((3, i, r))
        pair_done[a] = len(M) - 1
    ph2 = len(M)
    dchunks = [c for c in (3, 2, 1, 0) if 15 * c + 14 >= nd]
    if len(dchunks) > 2 and nd % 15:
        dchunks[-1], dchunks[-2] = dchunks[-2], dchunks[-1]
    for c in dchunks:
        for r in own:
            for i in (range(14, -1, -1) if o.zig and r >= 4 else range(15)):
                if 15 * c + i >= nd: M.append((c, i, r))
    NM = len(M)
    assert NM == 480 and len(set(M)) == 480
    last_of = {r: max(k for k, m in enumerate(M) if m[2] == r) for r in range(8)}
    first_of = {r: min(k for k, m in enumerate(M) if m[2] == r) for r in range(8)}

    inst = {}
    use = []
    for k, (c, i, r) in enumerate(M):
        wk = ("w", 15 * c + i)
        xk = ("x", c, r + i, 1 if (k >= ph2 and c < 4 - o.keep) else 0)
        for key in (wk, xk):
            d = inst.setdefault(key, dict(first=k, last=k))
            d["last"] = k
        use.append((wk, xk))
    order = sorted(inst, key=lambda key: (inst[key]["first"], key[0] == "w"))
    reads = []
    for key in order:
        reads += [(key, 0)] if key[0] == "x" else [(key, 0), (key, 1)]
    pubs = []
    n0 = 0
    for T in o.pub:
        pubs.append([("w", n) for n in range(n0, n0 + T)])
        n0 += T
    assert n0 == 60
    pubs[0].append(("x", 0))
    src_of = lambda key: ("w", key[1]) if key[0] == "w" else ("x", key[1] >> 1)
    first_read = {}
    last_read = {}
    for t, (key, half) in enumerate(reads):
        first_read.setdefault(src_of(key), t)
        last_read[src_of(key)] = t
    tpub = [min(first_read[d] for d in g) for g in pubs]
    gi = max(i for i, t in enumerate(tpub) if t <= first_read[("x", 1)])
    pubs[gi].append(("x", 1))
    pub_at = {tpub[i]: pubs[i] for i in range(len(pubs))}
    dmas = [("x", 0, z) for z in range(5)]
    for n in range(60):
        dmas.append(("w", n))
        if o.xblk >= 0:
            if n == o.xblk: dmas += [("x", 1, z) for z in range(5)]
        elif o.x1at <= n < o.x1at + 5 * o.x1step and (n - o.x1at) % o.x1step == 0:
            dmas.append(("x", 1, (n - o.x1at) // o.x1step))
    excl = {}
    def reserve(k, tag):
        while k in excl: k += 1
        excl[k] = tag
        return k
    for it in (o.pfs.split(",") if o.pfs else []):
        p_, kind = it.split(":")
        if int(p_) >= 0: reserve(int(p_), ("pf", kind))
    kk = o.d0
    nd_ = 0
    for d in dmas[o.NP:]:
        g = int(kk + 0.5)
        while g in excl or g - 1 in excl: g += 1
        excl[g] = ("dma", d)
        nd_ += 1
        kk += o.pace0 if nd_ < o.n0 else o.pace
        if nd_ == o.n0: kk += o.pause
    klast = g
    kp = o.kpoison if o.kpoison > 0 else klast + 2
    reserve(kp, "E")
    for a in range(3): reserve(kp + 2 + o.pz * a, ("poison", a))
    reserve(o.kflag, "flag"); reserve(o.kpoll, "poll"); reserve(o.kpoll2, "poll2")
    if o.touch: reserve(kp + 1, "touch")
    pos = [0] * len(reads)
    bpos = {}
    nxt = NM
    for t in range(len(reads) - 1, -1, -1):
        p = min(inst[reads[t][0]]["first"] - o.margin, nxt - 1, o.rcap)
        while p in excl: p -= 1
        pos[t] = p
        nxt = p
        if t in pub_at:
            p -= 1
            while p in excl or p - 1 in excl: p -= 1
            bpos[t] = p
            nxt = p
    prev = -1
    for t in range(len(reads)):
        if inst[reads[t][0]]["first"] < 8 and t < 10:
            pos[t] = -1
            continue
        if t in pub_at:
            p = max(bpos[t], prev + 1)
            while p in excl: p += 1
            bpos[t] = prev = p
        p = max(pos[t], prev + 1)
        while p in excl: p += 1
        pos[t] = prev = p
        assert pos[t] < inst[reads[t][0]]["first"], (t, reads[t], pos[t])
    for t in pub_at:
        if pos[t] >= 0: excl[bpos[t]] = ("bar", t)
    free = [(-10**9, s) for s in pool]
    for t, (key, half) in enumerate(reads):
        if half == 0:
            free.sort()
            assert free[0][0] + 1 <= pos[t], ("out of fragment registers", key, pos[t], free[0])
            _, s = free.pop(0)
            inst[key]["reg"] = s
            free.append((inst[key]["last"], s))

    vmq, lq = [], []
    state = dict(vm_done=-1, lg_done=-1, bar_lg=-1)
    def vm_wait_txt(labels):
        if o.nohs: labels = [l for l in labels if not (l in ("E", "flag", "poll", "poll2") or l[0] == "poison")]
        if not labels: return []
        idx = max(i for i, l in enumerate(vmq) if l in labels)
        for l in labels: assert vmq.count(l) == (5 if l[0] == "x" else 1), l
        if idx <= state["vm_done"]: return []
        state["vm_done"] = idx
        n = len(vmq) - 1 - idx
        assert n <= 63
        return [f"s_waitcnt vmcnt({n})"]
    published = set()
    def emit_pub(t, lg=None):
        n = 1
        w = vm_wait_txt(pub_at[t])
        if lg is not None:
            w = [(w[0] + " " if w else "s_waitcnt ") + f"lgkmcnt({lg})"]
        for x in w: A(x); n += 1
        A("s_barrier")
        state["bar_lg"] = state["lg_done"]
        published.add(t)
        if t == 0: stamp()
        return n
    def emit_read(t, gap):
        key, half = reads[t]
        n = 0
        if t in pub_at and t not in published:
            n += emit_pub(t)
        reg = inst[key]["reg"]
        if key[0] == "x":
            _, c, j, _ = key
            va = VA + 2 * (j >> 3) + (c & 1)
            A(f"ds_read_b128 {reg}, v{va} offset:{(c >> 1)*XPART + (j & 3)*XWV + ((j >> 2) & 1)*XCLS}")
        else:
            slot = key[1] % NR
            m = re.fullmatch(r"([va])\[(\d+):\d+\]", reg)
            b = int(m.group(2)) + 2 * half
            so_ = ((slot % 15) // 3) * 12288 + (slot % 3) * 1024 if o.m3 else (slot % 15) * 4096
            A(f"ds_read_b64_tr_b16 {m.group(1)}[{b}:{b+1}], v{VB + (slot >= 15)} offset:{so_ + half*512}")
        lq.append((key, gap))
        return n + 1
    def lg_wait(keys, k, emit=True):
        idx = max(i for i, l in enumerate(lq) if l[0] in keys)
        if idx <= state["lg_done"]: return 0 if emit else None
        old = [i for i, l in enumerate(lq) if l[1] <= k - o.lat]
        if old: idx = max(idx, old[-1])
        n = len(lq) - 1 - idx
        if n > 15:
            n = 15; idx = len(lq) - 1 - 15
        state["lg_done"] = idx
        if not emit: return n
        A(f"s_waitcnt lgkmcnt({n})")
        return 1
    def dma_txt(d):
        if d[0] == "x":
            _, p, z = d
            so = "0" if p == 0 else f"s{sP1}"
            return [f"s_add_u32 m0, s{sXb}, {p*XPART + z*1024}",
                    f"buffer_load_dwordx4 v{VXS+z}, s[{SX}:{SX+3}], {so} offen {o.xflags} lds"]
        c, i = divmod(d[1], 15)
        so = "0" if i == 0 else f"s{sTap+i}"
        if o.m3:
            return [f"s_add_u32 m0, s{sW3}, {RING0 + ((d[1] % NR) // 3)*12288}",
                    f"buffer_load_dwordx4 v{VWS+c}, s[{SW}:{SW+3}], {so} offen offset:{(i % 3)*1024} {o.wflags} lds"]
        return [f"s_add_u32 m0, s{sXl}, {RING0 + (d[1] % NR)*4096}",
                f"buffer_load_dwordx4 v{VWS+c}, s[{SW}:{SW+3}], {so} offen {o.wflags} lds"]
    def dma_ok(d):
        if d[0] == "w" and d[1] >= NR:
            t = last_read[("w", d[1] - NR)]
            return t < len(lq) and t <= state["bar_lg"]
        return True
    pfl = []
    for it in (o.pfs.split(",") if o.pfs else []):
        p_, kind = it.split(":")
        pfl.append((int(p_), kind))
    def pf_txt(kind):
        vmq.append(("pf", kind))
        r = VPF + [k_ for _, k_ in pfl].index(kind)
        srd = SX if kind == "x" else SW
        return [f"buffer_load_dword v{VPD}, v{r}, s[{srd}:{srd+3}], 0 offen {o.pfflags}"]

    t0, t1, t2, t3, t4, t5 = VT, VT + 1, VT + 2, VT + 3, VT + 4, VT + 5
    if o.map == 0:
        bKh, bTau, bMt, bPar, bBat = 2, 3, 4, 6, 7
    elif o.map == 1:
        bKh, bTau, bMt, bPar, bBat = 4, 3, 5, 7, 2
    else:
        bKh, bTau, bMt, bPar, bBat = 1, 0, 4, 6, 7
    sKh, sJ, sU, sBat, sSl, sX0 = 38, 40, 42, 63, 48, 46
    A(f".globl {name}")
    if o.align: A(".p2align 12")
    A(".p2align 8")
    A(f".type {name},@function")
    A(f"{name}:")
    stamp()
    if o.stamps: A("s_memrealtime s[96:97]")
    if o.diag: A("s_memrealtime s[94:95]")
    A("s_load_dwordx4 s[4:7], s[0:1], 0")
    A(f"s_load_dwordx2 s[{SO}:{SO+1}], s[0:1], 16")
    A(f"s_load_dwordx2 s[{SWS}:{SWS+1}], s[0:1], 32")
    A("s_cmp_ge_u32 s2, 256")
    A("s_cbranch_scc1 L_end")
    if o.bx: A(f"s_xor_b32 s2, s2, {o.bx}")
    if o.kprobe == 1:
        A("s_waitcnt lgkmcnt(0)")
        stamp()
    A(f"v_lshrrev_b32 v{t5}, 6, v0")
    A(f"v_and_b32 v{LANE}, 63, v0")
    A(f"v_readfirstlane_b32 s{sWave}, v{t5}")
    if o.codepf:
        A("s_getpc_b64 s[30:31]")
        if o.cshare:
            A("s_lshr_b32 s3, s2, 3")
            A(f"v_lshl_add_u32 v{t0}, s3, 2, v{t5}")
            A(f"v_min_u32 v{t0}, {o.codepf - 1}, v{t0}")
        else:
            A(f"v_min_u32 v{t0}, {o.codepf - 1}, v0")
        A(f"v_lshlrev_b32 v{t0}, 7, v{t0}")
        A(f"v_mov_b32 v{t1}, s31")
        A(f"v_add_co_u32 v{t0}, vcc, s30, v{t0}")
        A(f"s_bfe_u32 s{sKh}, s2, {0x10000 + bKh}")
        A(f"s_bfe_u32 s61, s2, {0x10000 + bTau}")
        A(f"v_addc_co_u32 v{t1}, vcc, 0, v{t1}, vcc")
        A(f"global_load_dword v{VPD}, v[{t0}:{t1}], off")
        vmq.append("code")
    else:
        A(f"s_bfe_u32 s{sKh}, s2, {0x10000 + bKh}")
        A(f"s_bfe_u32 s61, s2, {0x10000 + bTau}")
    A(f"s_lshl1_add_u32 s{sSig}, s{sKh}, s61")
    A(f"s_bfe_u32 s{sU}, s2, {0x20000 + bMt}")
    A(f"s_mul_i32 s{sU}, s{sU}, 125")
    A(f"s_sub_u32 s{sU}, s{sU}, s{sSig}")
    A(f"s_bfe_u32 s3, s2, {0x10000 + bPar}")
    A(f"s_lshl1_add_u32 s{sU}, s{sU}, s3")
    A(f"s_lshl_b32 s{sU}, s{sU}, 9")
    A(f"s_bfe_u32 s{sBat}, s2, {0x10000 + bBat}")
    A(f"s_mul_i32 s{sBat}, s{sBat}, 512000")
    A(f"s_lshl_b32 s{sXl}, s{sWave}, 10")
    A(f"s_lshl_b32 s3, s{sKh}, 8")
    A(f"s_add_u32 s3, s3, s{sU}")
    A(f"s_add_u32 s3, s3, s{sXl}")
    A(f"s_sub_u32 s{sX0}, s3, 14336")
    A(f"v_lshrrev_b32 v{t0}, 3, v{LANE}")
    A(f"v_and_b32 v{t4}, 7, v0")
    A(f"v_and_b32 v{t1}, 6, v{t0}")
    A(f"v_xor_b32 v{t1}, v{t1}, v{t4}")
    A(f"v_lshl_add_u32 v{t1}, v{t1}, 4, s{sX0}")
    A(f"v_lshl_add_u32 v{VXS}, v{t0}, 13, v{t1}")
    A(f"v_add_u32 v{t2}, 6, v{t0}")
    A(f"v_and_b32 v{t1}, 6, v{t2}")
    A(f"v_xor_b32 v{t1}, v{t1}, v{t4}")
    A(f"s_add_u32 s3, s{sX0}, 4096")
    A(f"v_lshl_add_u32 v{t1}, v{t1}, 4, s3")
    A(f"v_lshl_add_u32 v{VXS+3}, v{t2}, 13, v{t1}")
    A(f"v_cmp_gt_u32 vcc, 2, v{t0}")
    A(f"v_add_u32 v{t1}, 0x20000, v{VXS}")
    A(f"v_add_u32 v{t2}, 0xffff0000, v{VXS+3}")
    A(f"v_cndmask_b32 v{VXS+2}, v{t2}, v{t1}, vcc")
    A(f"v_add_u32 v{VXS+1}, 0x10000, v{VXS}")
    A(f"s_mul_i32 s{sXb}, s{sWave}, {XWV}")
    if o.m3: A(f"s_mul_i32 s{sW3}, s{sWave}, 3072")
    A(f"s_lshl_b32 s{sSl}, s{sKh}, 8")
    A(f"s_add_u32 s{sSl}, s{sSl}, s61")
    if o.map == 3:
        A("s_bfe_u32 s3, s2, 0x10002")
        A(f"s_bfe_u32 s{sJ}, s2, 0x10003")
        A(f"s_lshl1_add_u32 s{sJ}, s3, s{sJ}")
    else:
        A(f"s_and_b32 s{sJ}, s2, 3" if o.map != 2 else f"s_bfe_u32 s{sJ}, s2, 0x20002")
    A(f"s_lshl2_add_u32 s{sSl}, s{sSl}, s{sJ}")
    A(f"s_lshl_b32 s{sSl}, s{sSl}, 7")
    A(f"s_lshl_b32 s3, s{sWave}, 13")
    A(f"s_add_u32 s{sSl}, s{sSl}, s3")
    A(f"s_and_b32 s3, s{sWave}, 1")
    A("s_lshl_b32 s3, s3, 2")
    A(f"v_and_or_b32 v{t1}, v{t0}, 2, s3")
    A(f"v_xor_b32 v{t1}, v{t1}, v{t4}")
    A(f"v_lshl_add_u32 v{t1}, v{t1}, 4, s{sSl}")
    A(f"v_lshl_add_u32 v{VWS}, v{t0}, 10, v{t1}")
    A(f"s_mov_b32 s{SX+2}, 512000")
    A(f"s_mov_b32 s{SX+3}, 0x20000")
    A(f"s_mov_b32 s{SW+2}, 3932160")
    A(f"s_mov_b32 s{SW+3}, 0x20000")
    mid = []
    B = mid.append
    B(f"v_cmp_gt_u32 vcc, 4, v{t0}")
    B(f"v_add_u32 v{VXS+4}, 0x10000, v{VXS+3}")
    B(f"v_mov_b32 v{t5}, {OOB}")
    B(f"v_cndmask_b32 v{VXS+4}, v{t5}, v{VXS+4}, vcc")
    assert o.map != 1 and len(pfl) <= 4
    for n_, (p_, kind) in enumerate(pfl):
        r = VPF + n_
        if kind[0] == "w":
            c0, nc = int(kind[1]), len(kind) - 1
            if n_ == 0:
                B(f"s_lshr_b32 s{sT}, s2, {bMt}")
                B(f"s_lshl_b32 s{sT}, s{sT}, 18")
                B(f"s_add_u32 s{sT}, s{sT}, s{sSl}")
                if o.pfpair:
                    B(f"s_bfe_u32 s{sT2}, s2, 0x10003")
                    B(f"s_mul_i32 s{sT2}, s{sT2}, {4096 - 128}")
                    B(f"s_add_u32 s{sT}, s{sT}, s{sT2}")
                    B(f"v_and_b32 v{t3}, 1, v{t4}")
                    B(f"v_lshl_add_u32 v{t3}, v{t3}, 7, s{sT}")
                    B(f"v_lshrrev_b32 v{t2}, 1, v{t4}")
                    B(f"v_lshl_add_u32 v{t3}, v{t2}, 10, v{t3}")
                else:
                    B(f"v_lshl_add_u32 v{t3}, v{t4}, 10, s{sT}")
                B(f"v_lshl_add_u32 v{t3}, v{t0}, 15, v{t3}")
            B(f"v_cmp_gt_u32 vcc, {nc}, v{t0}")
            B(f"v_add_u32 v{r}, {c0*32768}, v{t3}")
            B(f"s_nop 0")
            B(f"v_cndmask_b32 v{r}, v{t5}, v{r}, vcc")
        else:
            B(f"s_bfe_u32 s{sT2}, s2, {0x10000 + (3 if o.map >= 2 else bTau)}")
            B(f"s_lshl_b32 s{sT2}, s{sT2}, 12")
            B(f"s_add_u32 s{sT2}, s{sT2}, s{sX0}")
            B(f"v_cmp_gt_u32 vcc, 18, v{LANE}")
            B(f"v_lshl_add_u32 v{r}, v{LANE}, 13, s{sT2}")
            B(f"v_add_u32 v{r}, 128, v{r}")
            B(f"v_cndmask_b32 v{r}, v{t5}, v{r}, vcc")
    npfmid = len(mid)
    for i in range(1, 15): B(f"s_mov_b32 s{sTap+i}, {i*262144 - ((i % 3)*1024 if o.m3 else 0)}")
    B(f"v_and_b32 v{t0}, 15, v{LANE}")
    B(f"v_lshrrev_b32 v{t1}, 4, v{LANE}")
    for d in range(3):
        if d: B(f"v_add_u32 v{t2}, {d}, v{t0}")
        md = t2 if d else t0
        B(f"v_and_b32 v{t3}, 6, v{md}")
        B(f"v_xor_b32 v{t3}, v{t3}, v{t1}")
        B(f"v_lshlrev_b32 v{t3}, 4, v{t3}")
        B(f"v_lshl_add_u32 v{VA+2*d}, v{md}, 7, v{t3}")
    B(f"v_lshrrev_b32 v{t2}, 2, v{t0}")
    if o.m3: B(f"v_mad_u32_u24 v{t2}, v{t1}, 24, v{t2}")
    else: B(f"v_lshl_add_u32 v{t2}, v{t1}, 3, v{t2}")
    B(f"v_bfe_u32 v{t3}, v{LANE}, 3, 2")
    B(f"v_xor_b32 v{t3}, s{sWave}, v{t3}")
    B(f"v_lshlrev_b32 v{t3}, 5, v{t3}")
    B(f"v_lshl_add_u32 v{t3}, v{t2}, 7, v{t3}")
    B(f"v_and_b32 v{t2}, 3, v{LANE}")
    B(f"v_lshl_add_u32 v{t3}, v{t2}, 3, v{t3}")
    B(f"v_add_u32 v{VB}, {RING0}, v{t3}")
    B(f"v_add_u32 v{VB+1}, {RING0 + 15*4096}, v{t3}")
    for d in range(3): B(f"v_xor_b32 v{VA+2*d+1}, 64, v{VA+2*d}")
    for c in range(1, 4): B(f"v_add_u32 v{VWS+c}, {c*32768}, v{VWS}")
    B(f"s_movk_i32 s{sP1}, 128")
    late = []
    B = late.append
    B([f"s_add_u32 s{SO}, s{SO}, s{sBat}", f"s_addc_u32 s{SO+1}, s{SO+1}, 0"])
    B(f"s_mov_b32 s{SO+2}, 512000")
    B(f"s_mov_b32 s{SO+3}, 0x20000")
    B(f"s_mov_b32 s{SWS+2}, 0x2000000")
    B(f"s_mov_b32 s{SWS+3}, 0x20000")
    B(f"s_lshr_b32 s3, s2, {bMt}")
    if o.map != 1:
        B(f"s_lshl2_add_u32 s3, s3, s{sJ}")
    else:
        B("s_and_b32 s4, s2, 7")
        B("s_lshl3_add_u32 s3, s3, s4")
    B(f"s_lshl2_add_u32 s4, s3, s{sWave}")
    B("s_mul_i32 s4, s4, 640")
    B(f"s_add_u32 s{sRec}, s4, {(3 << 20) + 4096}")
    B("s_lshl_b32 s3, s3, 14")
    B(f"s_add_u32 s3, s3, s{sXl}")
    B(f"s_lshl_b32 s5, s{sSig}, 12")
    B("s_add_u32 s5, s5, s3")
    for a in range(3):
        B(f"s_sub_u32 s4, s{sSig}, {a+1}")
        B("s_and_b32 s4, s4, 3")
        B("s_lshl_b32 s4, s4, 12")
        B(f"s_add_u32 s{sSend+a}, s4, s3")
        B([f"s_cmp_le_u32 s{sSig}, {2-a}", "s_cselect_b32 s4, 8, 0"])
        B(f"s_add_u32 s{sRecv+a}, s5, s4")
        if a < 2:
            B("s_add_u32 s3, s3, 0x100000")
            B("s_add_u32 s5, s5, 0x100000")
    B(f"v_lshlrev_b32 v{VE}, 4, v{LANE}")
    for q in range(4): B(f"v_mov_b32 v{VIN+q}, -1")
    B(f"v_mov_b32 v{VEP}, 0")
    B(f"v_mov_b32 v{t3}, {OOB}")
    B(f"s_lshl_b32 s4, s{sSig}, 7")
    B(f"v_add_u32 v{t2}, s4, v{VE}")
    B(f"v_cmp_gt_u32 vcc, 8, v{LANE}")
    B(f"v_and_b32 v{VFP}, 3, v{LANE}")
    B(f"v_lshlrev_b32 v{VFP}, 7, v{VFP}")
    B(f"v_cndmask_b32 v{VFL}, v{t3}, v{t2}, vcc")
    B(f"v_mov_b32 v{VEP+1}, 0")
    B(f"v_mov_b32 v{VEP+2}, 0")
    B(f"s_lshl2_add_u32 s3, s{sJ}, s{sWave}")
    B("s_lshl_b32 s3, s3, 5")
    B(f"s_add_u32 s3, s3, s{sU}")
    B("s_add_u32 s3, s3, 3072")
    B(f"v_lshl_add_u32 v{t2}, v{t1}, 3, s3")
    B(f"v_lshl_add_u32 v{VO}, v{t0}, 13, v{t2}")
    B([f"s_cmp_eq_u32 s{sSig}, 3", "s_cselect_b32 s3, 16, 15"])
    B([f"s_cmp_eq_u32 s{sSig}, 3", f"s_cselect_b32 s{sMask+1}, -1, 0x7fffffff"])
    B(f"v_cmp_gt_u32 vcc, s3, v{t0}")
    B(f"v_add_u32 v{VO+1}, 4096, v{VO}")
    B(f"s_mov_b32 s{sMask}, -1")
    B(f"v_cndmask_b32 v{VO+1}, v{t3}, v{VO+1}, vcc")
    B(f"s_mov_b32 s3, 0x4038aa3b")
    B([f"s_bitcmp1_b32 s{sSig}, 0", f"s_cselect_b32 s{sC1}, 0xbfb8aa3b, s3"])
    B([f"s_bitcmp1_b32 s{sSig}, 0", f"s_cselect_b32 s{sA1}, 0, 1.0"])
    B([f"s_bitcmp1_b32 s{sSig}, 0", f"s_cselect_b32 s{sA2}, 1.0, 0"])
    if o.stamps: B("s_mov_b32 s43, 0")
    di = 0
    pfq = list(pfl)
    nmid0 = len(mid)
    for _ in range(min(o.premid, len(mid))): A(mid.pop(0))
    t_ = dma_txt(dmas[0])[0]
    A(t_); state["m0"] = t_
    if o.kprobe == 2: stamp()
    A("s_waitcnt lgkmcnt(0)")
    stamp()
    A(f"s_add_u32 s{SX}, s4, s{sBat}")
    A(f"s_addc_u32 s{SX+1}, s5, 0")
    A(f"s_mov_b32 s{SW}, s6")
    A(f"s_mov_b32 s{SW+1}, s7")
    if o.latemix:
        for it in late: mid += [it] if isinstance(it, str) else ["\n".join(it)]
        nmid0 += len(late)
        late = []
    if o.pfonly:
        for x in mid[:npfmid]: A(x)
        for _, kind in pfl:
            for x in pf_txt(kind): A(x)
        A("s_waitcnt vmcnt(0)")
        A("s_endpgm")
    while di < o.NP:
        while pfq and pfq[0][0] <= di - 1000:
            while nmid0 - len(mid) < npfmid: A(mid.pop(0))
            for x in pf_txt(pfq.pop(0)[1]): A(x)
        tx = dma_txt(dmas[di])
        if dmas[di][0] == "w" and dmas[di][1] > 0:
            while nmid0 - len(mid) < npfmid + dmas[di][1]: A(mid.pop(0))
        if tx[0] != state.get("m0"):
            A(tx[0]); state["m0"] = tx[0]
            if mid: A(mid.pop(0))
        A(tx[1])
        vmq.append(dmas[di][:2]); di += 1
        if di in o.pstat: stamp()
        for _ in range(o.midn if di < o.NPa else len(mid)):
            if mid: A(mid.pop(0))
        if di == max(o.NPa, o.lateat) and o.latepro:
            for it in late:
                for x in ([it] if isinstance(it, str) else it): A(x)
            late = []
        if di == o.itat and o.itouch:
            A("s_mov_b64 exec, 0")
            if o.partouch:
                for n_ in range(1, o.itouch + 1):
                    A(f"s_cmp_eq_u32 s{sWave}, {n_}")
                    A(f"s_cbranch_scc1 L_touch{n_}")
            A("s_branch L_touch0")
            A("L_touched:")
            A("s_mov_b64 exec, -1")
    assert not mid
    while pfq and pfq[0][0] < 0:
        for x in pf_txt(pfq.pop(0)[1]): A(x)

    side = []
    hq = []
    slow = []
    def vm(txt, label):
        def f():
            if o.nohs and (label in ("E", "flag", "poll", "poll2") or label[0] == "poison"): return []
            vmq.append(label); return [txt]
        f.vm = True
        return f
    def wait(labels):
        return lambda: vm_wait_txt(labels)
    ws = f"s[{SWS}:{SWS+3}]"
    side.append((-1, [it if isinstance(it, str) else (lambda it=it: it) for it in late]))
    fixed = {}
    fixed["E"] = vm(f"buffer_load_dword v{VEP}, v{VEP}, {ws}, s{sRec} offen sc1", "E")
    for a in range(3):
        fixed[("poison", a)] = vm(f"buffer_store_dwordx4 v[{VIN}:{VIN+3}], v{VE}, {ws}, s{sSend+a} offen {o.sflags}", ("poison", a))
    side.append((o.kflag - 12, [wait(["E"]), f"v_add_u32 v{VEP}, {0 if o.nohs else EPC}, v{VEP}", lambda: state.update(ep=1) or []]))
    def flag():
        assert state.get("ep")
        return vm_wait_txt([("poison", 2)]) + vm(f"buffer_store_dwordx4 v[{VEP}:{VEP+3}], v{VFL}, {ws}, s{sRec} offen offset:128 {o.sflags}", "flag")()
    fixed["flag"] = flag
    fixed["poll"] = vm(f"buffer_load_dword v{VFV}, v{VFP}, {ws}, s{sRec} offen offset:128 sc1", "poll")
    for _, kind in pfq: fixed[("pf", kind)] = (lambda kind=kind: pf_txt(kind))
    ld_flag = lambda r: f"buffer_load_dword v{r}, v{VFP}, {ws}, s{sRec} offen offset:128 sc1"
    ld_in = lambda a: f"buffer_load_dwordx4 v[{VIN+4*a}:{VIN+4*a+3}], v{VE}, {ws}, s{sRecv+a} offen sc1"
    fixed["poll2"] = vm(ld_flag(VFV + 1), "poll2")
    fixed["touch"] = vm(f"buffer_load_dword v{VPD}, v{VO}, s[{SO}:{SO+3}], 0 offen", "touch")
    spin = lambda inc: ([f"s_add_u32 s43, s43, {inc}"] if o.stamps else []) + [
        f"s_add_u32 s{sSpin}, s{sSpin}, 1", f"s_cmp_gt_u32 s{sSpin}, {o.spin}", "s_cbranch_scc1 L_end"]
    side.append((o.kcheck, [f"s_mov_b32 s{sSpin}, 0", wait(["poll"]),
                            lambda: state.update(flagok=1) or [f"v_cmp_ne_u32 s[{sBad}:{sBad+1}], v{VFV}, v{VEP}"]]))
    def send(a):
        b0, b1 = ACC + 4 * a, ACC + 4 * (a + 4)
        p = []
        for q in range(4): p.append(f"v_mul_f32 v{b0+q}, s{sC1}, v{b0+q}")
        p.append(f"v_cvt_pk_bf16_f32 v{b0}, v{b0}, v{b0+1}")
        p.append(f"v_cvt_pk_bf16_f32 v{b0+1}, v{b0+2}, v{b0+3}")
        for q in range(2): p.append(f"v_min_u32 v{b0+q}, -2, v{b0+q}")
        side.append((last_of[a], ["s_nop 1"] * 3 + p))
        p = []
        for q in range(4): p.append(f"v_mul_f32 v{b1+q}, s{sC1}, v{b1+q}")
        p.append(f"v_cvt_pk_bf16_f32 v{b0+2}, v{b1}, v{b1+1}")
        p.append(f"v_cvt_pk_bf16_f32 v{b0+3}, v{b1+2}, v{b1+3}")
        for q in range(2, 4): p.append(f"v_min_u32 v{b0+q}, -2, v{b0+q}")
        p.append(vm(f"buffer_store_dwordx4 v[{b0}:{b0+3}], v{VE}, {ws}, s{sSend+a} offen {o.sflags}", ("send", a)))
        side.append((last_of[a + 4], ["s_nop 1"] * 3 + p))
    def recv(a, k):
        hq.append((k, vm(ld_in(a), ("recv", a))))
    def chk(a, x, prev=None):
        r0 = VIN + 4 * a
        c = [f"v_max_u32 v{x+1}, v{r0+2}, v{r0+3}", f"v_cndmask_b32 v{x+1}, 0, v{x+1}, s[{sMask}:{sMask+1}]"]
        if prev is None:
            return c + [f"v_max3_u32 v{x}, v{x+1}, v{r0}, v{r0+1}"]
        return c + [f"v_max3_u32 v{x+1}, v{x+1}, v{r0}, v{r0+1}", f"v_max_u32 v{x}, v{x}, v{x+1}"]
    send(0); recv(0, o.kr[0])
    send(2); recv(2, o.kr[1])
    send(1); recv(1, o.kr[2])
    kb = [k_ for k_ in o.kb if k_ > 0]
    for n_, k_ in enumerate(kb): hq.append((k_, vm(ld_in(1), ("bak", n_))))
    hq.sort(key=lambda x: x[0])
    TA, TB, X = VT + 8, VT + 16, VT
    unpack = lambda a, d: [t for q in range(4) for t in
                           (f"v_lshlrev_b32 v{d+2*q}, 16, v{VIN+4*a+q}", f"v_and_b32 v{d+2*q+1}, 0xffff0000, v{VIN+4*a+q}")]
    other = unpack(2, TB)
    for q in range(8): other.append(f"v_add_f32 v{TA+q}, v{TA+q}, v{TB+q}")
    for q in range(8): other.append(f"v_exp_f32 v{TA+q}, v{TA+q}")
    for q in range(8): other.append(f"v_add_f32 v{TA+q}, 1.0, v{TA+q}")
    for q in range(8): other.append(f"v_rcp_f32 v{TA+q}, v{TA+q}")
    for q in range(8): other.append(f"v_fma_f32 v{TB+q}, v{TA+q}, -2.0, s{sA2}")
    for q in range(8): other.append(f"v_mul_f32 v{TA+q}, s{sA1}, v{TA+q}")
    eupd = vm(f"buffer_store_dword v{VEP}, v{VFL}, {ws}, s{sT2} offen {o.eflags}", "Eupd")
    side.append((o.kr[3], [wait([("recv", 0)])] + chk(0, X) + unpack(0, TA)))
    side.append((o.kr[4], [wait([("recv", 2), "poll2"])] + chk(2, X, X) + [f"v_cmp_eq_u32 vcc, -1, v{X}",
                 lambda: state.update(ochk=1, nhq=len(hq)) or [f"s_or_b64 s[{sBad}:{sBad+1}], s[{sBad}:{sBad+1}], vcc", "s_cbranch_scc1 L_again", "L_backo:"]] + ([eupd] if o.eearly else []) + other))
    slow += ["L_again:", f"v_cmp_ne_u32 vcc, v{VFV+1}, v{VEP}", "s_cbranch_vccz L_again1", ld_flag(VFV + 1)] + spin(1) + [
             "s_waitcnt vmcnt(0)", "s_branch L_again", "L_again1:", ld_in(0), ld_in(2), ld_in(1), "s_branch L_backo"]
    nlate = sum(1 for k_ in kb + [o.kr[2]] if k_ > o.kr[4] + 4)
    po = pack(unpack(0, TA) + other)
    slow += ["L_rec:", f"s_waitcnt vmcnt({1 + nlate + o.eearly})", "L_rec2:"] + chk(0, X) + chk(2, X, X) + [
             f"v_cmp_eq_u32 vcc, -1, v{X}", "s_cbranch_vccnz L_rec1", ld_in(1)] + po + ["s_waitcnt vmcnt(1)", "s_branch L_slows2" if kb else "s_branch L_slows3"]
    slow += ["L_rec1:", ld_in(0), ld_in(2)] + spin(256) + ["s_waitcnt vmcnt(0)", "s_branch L_rec2"]
    if not kb:
        slow += ["L_slows3:"] + chk(1, X) + [f"v_cmp_eq_u32 vcc, -1, v{X}", "s_cbranch_vccz L_backs", "s_waitcnt vmcnt(0)", "s_branch L_slows2"]
    slow += ["L_slows:", ld_in(1)] + spin(65536) + [f"s_waitcnt vmcnt({len(kb)})", "L_slows2:"] + chk(1, X) + [
             f"v_cmp_eq_u32 vcc, -1, v{X}", "s_cbranch_vccnz L_slows", "s_branch L_backs"]
    U = ACC + 16
    fin = [wait([("recv", 1)])] + chk(1, X) + [f"v_cmp_eq_u32 vcc, -1, v{X}", lambda: ["s_cbranch_vccnz L_slows", "L_backs:"]] + unpack(1, U)
    regs = [(ACC + 4 * r + q, 4 * h + q) for h, r in enumerate(own) for q in range(4)]
    if o.finord == 0:
        for b, e in regs: fin.append(f"v_fma_f32 v{b}, v{b}, s{sC1}, v{U+e}")
        for b, e in regs: fin.append(f"v_exp_f32 v{b}, v{b}")
        for b, e in regs: fin.append(f"v_add_f32 v{b}, 1.0, v{b}")
    else:
        up = fin[-8:]; fin = fin[:-8]
    for h, r in enumerate(own):
        b = ACC + 4 * r
        if o.finord:
            fin += up[4*h:4*h+4]
            for q in range(4): fin.append(f"v_fma_f32 v{b+q}, v{b+q}, s{sC1}, v{U+4*h+q}")
            for q in range(4): fin.append(f"v_exp_f32 v{b+q}, v{b+q}")
            for q in range(4): fin.append(f"v_add_f32 v{b+q}, 1.0, v{b+q}")
        for q in range(4): fin.append(f"v_rcp_f32 v{b+q}, v{b+q}")
        for q in range(4): fin.append(f"v_fma_f32 v{b+q}, v{b+q}, v{TB+4*h+q}, v{TA+4*h+q}")
        fin.append(f"v_cvt_pk_bf16_f32 v{b}, v{b}, v{b+1}")
        fin.append(f"v_cvt_pk_bf16_f32 v{b+1}, v{b+2}, v{b+3}")
        fin.append(vm(f"buffer_store_dwordx2 v[{b}:{b+1}], v{VO+h}, s[{SO}:{SO+3}], 0 offen {o.oflags}", ("out", h)))
    if o.tstat: fin = [stamp_txt, fin[0], stamp_txt] + fin[1:]
    side.append((10**5, fin))
    side.append((o.kcheck - 8, [lambda: [f"s_cmp_lg_u32 s{sSig}, 0", f"s_cselect_b32 s{sT2}, 0x2000000, s{sRec}"]]))
    if not o.eearly: side.append((o.keupd, [eupd]))
    side.sort(key=lambda x: x[0])
    sq = []
    for k, p in side:
        for it in p: sq.append((k, it))
    def cost(t):
        if t.endswith(":"): return 0
        return 2 if (t.split()[0] in TRANS or t == "s_nop 1") else 1

    dgaps = sorted(g for g, tag in excl.items() if tag[0] == "dma")
    def set_m0():
        t_ = dma_txt(excl[dgaps[0]][1])[0]
        if t_ == state.get("m0"): return 0
        A(t_); state["m0"] = t_
        return 1
    set_m0()
    rt = 0
    while rt < len(reads) and pos[rt] < 0:
        emit_read(rt, max(0, rt - 2)); rt += 1
    info = []
    rgaps = set(pos)
    def needs_wait(kk):
        iss = [ii for ii, l in enumerate(lq) if l[0] in use[kk]]
        return max(iss) > state["lg_done"]
    def all_issued(kk):
        return all(sum(1 for l in lq if l[0] == key) == (2 if key[0] == "w" else 1) for key in use[kk])
    for k in range(NM):
        c, i, r = M[k]
        wk, xk = use[k]
        lg_wait((wk, xk), k)
        acc = f"v[{ACC+4*r}:{ACC+4*r+3}]"
        A(f"v_mfma_f32_16x16x32_bf16 {acc}, {inst[wk]['reg']}, {inst[xk]['reg']}, {'0' if k == first_of[r] else acc}")
        used = 0
        if k in excl:
            tag = excl[k]
            if tag[0] == "dma":
                d = tag[1]
                assert d == dmas[di] and dma_ok(d), (k, d)
                tx = dma_txt(d)
                set_m0()
                A(tx[1]); vmq.append(d[:2]); di += 1
                dgaps.pop(0)
                info.append(f"{d[0]}{d[1]}@{k}")
            elif tag[0] == "bar":
                emit_pub(tag[1])
            else:
                for x in fixed[tag](): A(x)
            assert not (rt < len(reads) and pos[rt] <= k)
        else:
            while rt < len(reads) and pos[rt] <= k:
                used += emit_read(rt, k); rt += 1
            kk = k + 1
            keys = ()
            while kk < NM:
                if all_issued(kk) and needs_wait(kk): keys += use[kk]
                if kk not in excl: break
                kk += 1
            barw = k + 1 in excl and excl[k + 1][0] == "bar"
            if keys or barw: used += 1
            while used < 2:
                if dgaps and dma_txt(excl[dgaps[0]][1])[0] != state.get("m0") and (
                        used == 0 or not any(g_ not in excl and g_ not in rgaps for g_ in range(k + 1, dgaps[0]))):
                    used += set_m0()
                    continue
                if hq and hq[0][0] <= k and state.get("flagok"):
                    if used: break
                    for x in hq.pop(0)[1](): A(x)
                    used = 2
                    continue
                if sq and sq[0][0] <= k:
                    it = sq[0][1]
                    if isinstance(it, str) and cost(it) + used > 2: break
                    if not isinstance(it, str) and used and (sq[0][0] < 0 or getattr(it, "vm", False)): break
                    sq.pop(0)
                    for x in ([it] if isinstance(it, str) else it()):
                        A(x); used += cost(x)
                    if getattr(it, "vm", False): used = 2
                    continue
                break
            w = vm_wait_txt(pub_at[excl[k + 1][1]]) if barw else []
            if keys:
                n = lg_wait(keys, k + 1, False)
                w = [(w[0] + " " if w else "s_waitcnt ") + f"lgkmcnt({n})"]
            for x in w: A(x)
        if o.stamps and k in o.stat: stamp()
    assert di == len(dmas) and rt == len(reads), (di, len(dmas), rt)
    A(f"; tail: {len(sq)} side instructions left")
    if o.verbose:
        print("dma issue:", " ".join(info), file=sys.stderr)
        print("publish:", " ".join(f"{bpos[t]}:{g[0][1]}-{max(x[1] for x in g if x[0]=='w')}{'+x' if any(x[0]=='x' for x in g) else ''}" for t, g in sorted(pub_at.items())), file=sys.stderr)
        print("pair_done", pair_done, "tail", len(sq), file=sys.stderr)
    assert not hq and state.get("ochk") and state["nhq"] == nlate, (state, nlate)
    A(f"s_cmp_lg_u64 s[{sBad}:{sBad+1}], 0")
    A("s_cbranch_scc1 L_rec")
    tl = []
    while sq:
        it = sq.pop(0)[1]
        tl += [it] if isinstance(it, str) else it()
    for x in pack(tl): A(x)
    if o.stamps and o.diag:
        stamp()
        A("s_waitcnt vmcnt(0)")
        stamp()
    elif o.stamps:
        stamp()
        A("s_waitcnt vmcnt(0)")
        stamp()
        A("s_memrealtime s[98:99]")
        A("s_waitcnt lgkmcnt(0)")
        A("s_lshl_b32 s3, s2, 2")
        A(f"s_add_u32 s3, s3, s{sWave}")
        A("s_lshl_b32 s3, s3, 7")
        A("s_add_u32 s3, s3, 0x1000000")
        A("v_mov_b32 v30, s3")
        assert STAMP + 2 * nst[0] <= 94
        for b in range(1, nst[0]):
            A(f"s_sub_u32 s3, s{STAMP+2*b}, s{STAMP}")
            A("v_mov_b32 v31, s3")
            A(f"buffer_store_dword v31, v30, {ws}, 0 offen offset:{4*b}")
        A(f"s_getreg_b32 s3, hwreg(HW_REG_XCC_ID)")
        A(f"v_mov_b32 v31, s3")
        A(f"buffer_store_dword v31, v30, {ws}, 0 offen offset:{4*28}")
        A(f"v_mov_b32 v31, {nst[0] + 256*o.rt}")
        A(f"buffer_store_dword v31, v30, {ws}, 0 offen offset:0")
        A(f"v_mov_b32 v31, s43")
        A(f"buffer_store_dword v31, v30, {ws}, 0 offen offset:{4*29}")
        A("v_mov_b32 v31, s96")
        A(f"buffer_store_dword v31, v30, {ws}, 0 offen offset:{4*30}")
        A("v_mov_b32 v31, s98")
        A(f"buffer_store_dword v31, v30, {ws}, 0 offen offset:{4*31}")
    if o.diag:
        A("s_waitcnt vmcnt(0) lgkmcnt(0)")
        A("s_mov_b32 s3, 0")
        d = o.diag.split(":")
        if d[0] == "xcc":
            A("s_getreg_b32 s3, hwreg(HW_REG_XCC_ID)")
            A("s_sub_u32 s3, s3, s2")
            A("s_and_b32 s3, s3, 7")
            A("s_mul_i32 s3, s3, 500")
        if d[0] == "only":
            A("s_and_b32 s3, s2, 7")
            A(f"s_cmp_eq_u32 s3, {d[1]}")
            A("s_cselect_b32 s3, 1000, 0")
        if d[0] == "enc":
            A(f"s_sub_u32 s3, s{STAMP+2*int(d[2])}, s{STAMP+2*int(d[1])}")
            A(f"s_mul_i32 s3, s3, {d[3]}")
            A("s_min_u32 s3, s3, 20000")
            if len(d) > 4:
                A(f"s_cmp_eq_u32 s2, {d[4]}")
                A("s_cselect_b32 s3, s3, 0")
        A("s_add_u32 s3, s3, 4000")
        A("L_spin:")
        A("s_memrealtime s[4:5]")
        A("s_waitcnt lgkmcnt(0)")
        A("s_sub_u32 s6, s4, s94")
        A("s_cmp_lt_u32 s6, s3")
        A("s_cbranch_scc1 L_spin")
    A("L_end:")
    A("s_endpgm")
    L.extend(slow)
    L = [y for x in L for y in x.split("\n")]
    if o.abl:
        first = next(i for i, l in enumerate(L) if l.startswith("v_mfma"))
        end = next(i for i, l in enumerate(L) if l.startswith("; tail"))
        K = []
        for i, l in enumerate(L):
            if first < i < end:
                if "b" in o.abl and l == "s_barrier": continue
                if "d" in o.abl and l.endswith(" lds"): continue
                if "w" in o.abl and l.startswith("s_waitcnt vmcnt"):
                    l = re.sub(r"vmcnt\(\d+\)", "", l)
                    if l.strip() == "s_waitcnt": continue
                if "l" in o.abl and l.startswith("s_waitcnt lgkmcnt"): continue
                if "r" in o.abl and l.startswith("ds_read"): continue
                if "x" in o.abl and (" sc1" in l or l.startswith("s_cbranch")): continue
                if "v" in o.abl and l.startswith("v_") and not l.startswith("v_mfma") and not l.startswith("v_cmp"): continue
            if "x" in o.abl and i >= end and (l.startswith("s_cbranch_vccnz L_slows") or l.startswith("s_cbranch_scc1 L_rec")): continue
            K.append(l)
        L = K
    return fix_hazards(L), NV, RING0 + NR * 4096

def disasm(lines):
    import subprocess, tempfile
    d = tempfile.mkdtemp()
    open(d + "/a.s", "w").write('.amdgcn_target "amdgcn-amd-amdhsa--gfx950"\n.text\n' + "\n".join(lines) + "\n")
    subprocess.run(["clang", "-x", "assembler", "-target", "amdgcn-amd-amdhsa", "-mcpu=gfx950", "-c", d + "/a.s", "-o", d + "/a.o"], check=True)
    dis = subprocess.run(["llvm-objdump", "-d", "--mcpu=gfx950", d + "/a.o"], capture_output=True, text=True).stdout
    return [int(l.split("//")[1].split(":")[0], 16) for l in dis.splitlines() if "//" in l]

def add_touches(body, extra, par, entry_off=0x300):
    isins = lambda l: l.split(";")[0].strip() and not l.strip().endswith(":") and not l.startswith(".")
    n = 0
    while True:
        ad = disasm(body + [f"L_touch{z}:" for z in range(n, 5)])
        idx = [i for i, l in enumerate(body) if isins(l)]
        assert len(idx) == len(ad)
        page = 4096 * (n + 1) - entry_off
        if ad[-1] < page: break
        cand = [(i, a) for i, a in zip(idx, ad) if page <= a <= page + 56]
        best = None
        for i, a in cand:
            if body[i].startswith("v_mfma"):
                j, cnt = i - 1, 0
                while not body[j].startswith("v_mfma"):
                    cnt += 2 if (body[j].startswith("buffer") or body[j] == "s_barrier" or body[j].split()[0] in TRANS or body[j] == "s_nop 1") else 1
                    j -= 1
                if best is None or cnt < best[0]: best = (cnt, i)
        i = best[1]
        body = body[:i] + [f"L_touch{n}:", f"s_cbranch_execz {'L_touched' if par else f'L_touch{n+1}'}"] + body[i:]
        n += 1
    for lab in extra:
        i = body.index(lab + ":")
        assert body[i - 1].split()[0] in ("s_branch", "s_endpgm")
        body = body[:i] + [f"L_touch{n}:", f"s_branch {'L_touched' if par else f'L_touch{n+1}'}"] + body[i:]
        n += 1
    return [l.replace(f"L_touch{n}", "L_touched") for l in body]

def build(o):
    body, nv, lds = gen_main(KNAME, o)
    if o.itouch: body = add_touches(body, ["L_again", "L_rec1"][:o.itouch - 1], o.partouch)
    txt = HDR + f"; @launch grid=(256,1,1) block=(256,1,1) lds={lds}\n"
    txt += '.amdgcn_target "amdgcn-amd-amdhsa--gfx950"\n.text\n' + "\n".join(body) + "\n"
    if o.codepf:
        txt += ".fill 64, 4, 0xbf810000\n"
    txt += f""".section .rodata,"a"
.p2align 6
.amdhsa_kernel {KNAME}
  .amdhsa_next_free_vgpr {nv}
  .amdhsa_next_free_sgpr 102
  .amdhsa_accum_offset 256
  .amdhsa_group_segment_fixed_size 0
  .amdhsa_kernarg_size 40
  .amdhsa_user_sgpr_count 2
  .amdhsa_user_sgpr_kernarg_segment_ptr 1
  .amdhsa_system_sgpr_workgroup_id_x 1
.end_amdhsa_kernel
"""
    return txt

def opts(argv=None):
    p = argparse.ArgumentParser()
    il = lambda s: [int(x) for x in s.split(",")]
    p.add_argument("-o", default="/dev/stdout")
    p.add_argument("--NR", type=int, default=30)
    p.add_argument("--nd", type=int, default=30)
    p.add_argument("--keep", type=int, default=2)
    p.add_argument("--nacc", type=int, default=64)
    p.add_argument("--groups", type=lambda s: [il(x) for x in s.split("/")], default="1,1,1,2,2,3,5/5,5,5/7,8/15")
    p.add_argument("--pub", type=il, default="1,1,1,2,2,3,5,5,5,5,5,5,5,5,5,5")
    p.add_argument("--margin", type=int, default=7)
    p.add_argument("--lat", type=int, default=5)
    p.add_argument("--NP", type=int, default=11)
    p.add_argument("--pace", type=float, default=4.5)
    p.add_argument("--x1at", type=int, default=18)
    p.add_argument("--x1step", type=int, default=2)
    p.add_argument("--pfs", default="-994:w0,-1:w123")
    p.add_argument("--d0", type=float, default=2)
    p.add_argument("--pace0", type=float, default=4.5)
    p.add_argument("--n0", type=int, default=0)
    p.add_argument("--pause", type=float, default=0)
    p.add_argument("--kb", type=il, default="0,0,0")
    p.add_argument("--depth", type=int, default=3)
    p.add_argument("--nap", type=int, default=2)
    p.add_argument("--keupd", type=int, default=10**6)
    p.add_argument("--eflags", default="")
    p.add_argument("--pfpair", type=int, default=0)
    p.add_argument("--bx", type=int, default=0)
    p.add_argument("--pfonly", type=int, default=0)
    p.add_argument("--nohs", type=int, default=0)
    p.add_argument("--pstat", type=il, default="99")
    p.add_argument("--m3", type=int, default=0)
    p.add_argument("--xblk", type=int, default=-1)
    p.add_argument("--cshare", type=int, default=0)
    p.add_argument("--partouch", type=int, default=0)
    p.add_argument("--lateat", type=int, default=0)
    p.add_argument("--finord", type=int, default=0)
    p.add_argument("--eearly", type=int, default=0)
    p.add_argument("--tstat", type=int, default=0)
    p.add_argument("--zig", type=int, default=0)
    p.add_argument("--kprobe", type=int, default=0)
    p.add_argument("--premid", type=int, default=0)
    p.add_argument("--latemix", type=int, default=0)
    p.add_argument("--sflags", default="sc1")
    p.add_argument("--pz", type=int, default=5)
    p.add_argument("--kpoison", type=int, default=0)
    p.add_argument("--kflag", type=int, default=330)
    p.add_argument("--kpoll", type=int, default=362)
    p.add_argument("--kcheck", type=int, default=395)
    p.add_argument("--kr", type=il, default="392,418,448,432,458")
    p.add_argument("--kpoll2", type=int, default=420)
    p.add_argument("--touch", type=int, default=0)
    p.add_argument("--itouch", type=int, default=0)
    p.add_argument("--itat", type=int, default=9)
    p.add_argument("--rcap", type=int, default=480)
    p.add_argument("--NPa", type=int, default=7)
    p.add_argument("--midn", type=int, default=5)
    p.add_argument("--latepro", type=int, default=1)
    p.add_argument("--spin", type=int, default=200000)
    p.add_argument("--xflags", default="")
    p.add_argument("--wflags", default="")
    p.add_argument("--pfflags", default="")
    p.add_argument("--oflags", default="")
    p.add_argument("--stamps", type=int, default=0)
    p.add_argument("--rt", type=int, default=0)
    p.add_argument("--stat", type=il, default="119,239,359,419,479")
    p.add_argument("--align", type=int, default=1)
    p.add_argument("--verbose", type=int, default=0)
    p.add_argument("--abl", default="")
    p.add_argument("--map", type=int, default=2)
    p.add_argument("--codepf", type=int, default=-1)
    p.add_argument("--diag", default="")
    return p.parse_args(argv)

def code_lines(txt):
    import subprocess, tempfile, os
    d = tempfile.mkdtemp()
    open(d + "/a.s", "w").write(txt)
    subprocess.run(["clang", "-x", "assembler", "-target", "amdgcn-amd-amdhsa", "-mcpu=gfx950", "-c", d + "/a.s", "-o", d + "/a.o"], check=True)
    dis = subprocess.run(["llvm-objdump", "-d", "--mcpu=gfx950", d + "/a.o"], capture_output=True, text=True).stdout
    addr = lambda l: int(l.split("//")[1].split(":")[0], 16)
    ls = [l for l in dis.splitlines() if "//" in l]
    pc = next(addr(l) for l in ls if "s_getpc" in l) + 4
    end = max(addr(l) for l in ls if "s_branch L_back" in l) + 4
    return (end - pc) // 128 + 2

if __name__ == "__main__":
    o = opts()
    if o.codepf < 0:
        o.codepf = 100
        v, o.verbose = o.verbose, 0
        o.codepf = code_lines(build(o))
        o.verbose = v
    open(o.o, "w").write(build(o))
```

```python
import sys, argparse, re

KNAME = "standalone__autoregressive_conv_wavernn__speech_kernel"
HDR = """; Kernarg layout for this problem (40 bytes, ptrs only, base s[0:1]):
"""
XPART, XCLS, XWV = 20480, 2304, 5120
RING0 = 2 * XPART
OOB = 0x7ffffff0
OROW, OBASE = 144, 2 * XPART
EPC = 0x9e3779b1

def regs_of(tok):
    m = re.fullmatch(r"([va])\[(\d+):(\d+)\]", tok)
    if m:
        return {(m.group(1), i) for i in range(int(m.group(2)), int(m.group(3)) + 1)}
    m = re.fullmatch(r"-?([va])(\d+)", tok)
    if m:
        return {(m.group(1), int(m.group(2)))}
    return set()

TRANS = ("v_exp_f32", "v_rcp_f32")
def fix_hazards(lines):
    out = []
    hist = []
    def dist_needed(pred, need):
        d = 0
        for h in reversed(hist):
            if d >= need:
                return 0
            if pred(h):
                return need - d
            d += h["w"]
        return 0
    for ln in lines:
        s = ln.split(";")[0].strip()
        if not s or s.endswith(":") or s.startswith("."):
            out.append(ln)
            continue
        mn, *rest = s.split(None, 1)
        ops = [t.strip() for t in rest[0].split(",")] if rest else []
        ops = [t.split()[0] if t else t for t in ops]
        h = dict(mn=mn, w=1, wr=set(), rd=set(), mf=False, valu=False, c=set(), swr=set(), store=False)
        if mn == "s_nop":
            h["w"] = int(ops[0]) + 1
        isv = mn.startswith("v_")
        if mn.startswith("v_mfma"):
            h["mf"] = True
            h["wr"] = regs_of(ops[0]); h["rd"] = regs_of(ops[1]) | regs_of(ops[2]); h["c"] = regs_of(ops[3])
        elif isv:
            h["valu"] = True
            if mn.startswith("v_cmp") or mn.startswith("v_readfirstlane"):
                h["swr"] = {ops[0]}
                for t in ops[1:]: h["rd"] |= regs_of(t)
            else:
                h["wr"] = regs_of(ops[0])
                for t in ops[1:]: h["rd"] |= regs_of(t)
                if "_co_" in mn: h["swr"] = {"vcc"}
        elif mn.startswith("buffer_store") or mn.startswith("ds_write"):
            for t in ops: h["rd"] |= regs_of(t)
            h["store"] = mn.endswith("x4") or mn.endswith("x3")
            h["data"] = regs_of(ops[0])
        elif mn.startswith("buffer_load") or mn.startswith("global_load"):
            if s.endswith(" lds"):
                h["rd"] = regs_of(ops[0])
            else:
                h["wr"] = regs_of(ops[0]); h["rd"] = regs_of(ops[1])
        elif mn.startswith("ds_read"):
            h["wr"] = regs_of(ops[0]); h["rd"] = regs_of(ops[1])
        n = 0
        touch = h["wr"] | h["rd"]
        if h["mf"]:
            n = max(n, dist_needed(lambda p: p["valu"] and p["wr"] & (h["rd"] | h["c"]), 2))
            n = max(n, dist_needed(lambda p: p["mf"] and p["wr"] & h["rd"], 8))
            n = max(n, dist_needed(lambda p: p["mf"] and (p["wr"] & h["c"]) and p["wr"] != h["c"], 6))
        elif touch:
            n = max(n, dist_needed(lambda p: p["mf"] and p["wr"] & touch, 8))
        if h["valu"]:
            n = max(n, dist_needed(lambda p: p["mf"] and p["c"] & h["wr"], 3))
            n = max(n, dist_needed(lambda p: p["store"] and p["data"] & h["wr"], 2))
            if mn not in TRANS:
                n = max(n, dist_needed(lambda p: p["mn"] in TRANS and p["wr"] & h["rd"], 1))
            if mn.startswith("v_readfirstlane"):
                n = max(n, dist_needed(lambda p: p["valu"] and p["wr"] & h["rd"], 1))
            sread = {t for t in ops[1:] if re.fullmatch(r"s\d+|vcc|s\[\d+:\d+\]", t)}
            n = max(n, dist_needed(lambda p: p["valu"] and p["swr"] & sread, 2))
        elif h["wr"]:
            n = max(n, dist_needed(lambda p: p["store"] and p["data"] & h["wr"], 1))
        if mn.startswith("buffer_") and s.endswith(" lds"):
            n = max(n, dist_needed(lambda p: p["mn"].startswith("s_") and p.get("m0"), 1))
        if mn.startswith("s_") and ops and ops[0] == "m0":
            h["m0"] = True
        if n:
            out.append(f"s_nop {n-1}")
            hist.append(dict(mn="s_nop", w=n, wr=set(), rd=set(), mf=False, valu=False, c=set(), swr=set(), store=False))
        out.append(ln)
        hist.append(h)
        hist = hist[-24:]
    return out

def pack(lines):
    out, i = [], 0
    while i < len(lines):
        a = lines[i].replace(",", "").split()
        b = lines[i + 1].replace(",", "").split() if i + 1 < len(lines) else []
        if a[0] in ("v_add_f32", "v_mul_f32", "v_fma_f32") and b and a[0] == b[0]:
            ops, hi, ok = [], [], True
            for x, y in zip(a[1:], b[1:]):
                if re.fullmatch(r"v\d+", x) and y == f"v{int(x[1:])+1}" and int(x[1:]) % 2 == 0:
                    ops.append(f"v[{x[1:]}:{y[1:]}]"); hi.append(1)
                elif x == y and re.fullmatch(r"s\d+", x) and int(x[1:]) % 2 == 0:
                    ops.append(f"s[{x[1:]}:{int(x[1:])+1}]"); hi.append(0)
                elif x == y and x in ("1.0", "-2.0"):
                    ops.append(x); hi.append(0)
                else:
                    ok = False
            if ok:
                sel = "" if all(hi) else " op_sel_hi:[" + ",".join(map(str, hi[1:])) + "]"
                out.append(f"v_pk_{a[0][2:]} " + ", ".join(ops) + sel)
                i += 2
                continue
        out.append(lines[i]); i += 1
    return out

def gen_main(name, o):
    L = []
    A = L.append
    NR = o.NR
    ACC = 0
    VA = 32
    VB = 38
    VXS = 40
    VWS = 45
    VO = 49
    VE = 51
    VFL = 52
    VFP = 53
    VEP = 54
    VFV = 55
    VPF = 80
    VPD = 57
    LANE = 58
    VOR = 59
    VIN = 60
    VT = 72
    VPOOL = 96
    nvp = (256 - VPOOL) // 4
    pool = [f"v[{VPOOL+4*i}:{VPOOL+4*i+3}]" for i in range(nvp)] + [f"a[{4*i}:{4*i+3}]" for i in range(o.nacc)]
    NV = 256 + 4 * o.nacc
    SX, SW, SO, SWS = 8, 12, 16, 20
    sWave, sSig, sXb, sXl, sT, sT2 = 24, 25, 26, 27, 28, 29
    sSend, sRecv = 30, 33
    sRec = 36
    sC1, sA1, sA2, sBad = 4, 6, 38, 40
    sMask = 44
    sSpin = 46
    sW3 = 37
    sP1 = 47
    sTap = 48
    STAMP = 64
    nst = [0]
    def stamp_txt():
        if not o.stamps: return []
        r = STAMP + 2 * nst[0]; nst[0] += 1
        return [f"{'s_memrealtime' if o.rt else 's_memtime'} s[{r}:{r+1}]"]
    def stamp():
        for t in stamp_txt(): A(t)

    own = [3, 7]
    M = []
    nd = o.nd
    for c in range(3):
        i0 = 0
        for T in o.groups[c]:
            z_ = 0
            for r in range(8):
                taps = [i for i in range(i0, i0 + T) if not (r in own and 15 * c + i >= nd)]
                if not taps: continue
                for i in (taps[::-1] if o.zig and z_ & 1 else taps): M.append((c, i, r))
                z_ += 1
            i0 += T
        assert i0 == 15
    assert nd <= 45
    pair_done = {}
    i0 = 0
    for T in o.groups[3][:-1]:
        for r in [0, 4, 2, 6, 1, 5]:
            for i in range(i0, i0 + T):
                M.append((3, i, r))
        i0 += T
    for a in (0, 2, 1):
        for r in (a, a + 4):
            for i in (range(14, i0 - 1, -1) if o.zig and r >= 4 else range(i0, 15)):
                M.append((3, i, r))
        pair_done[a] = len(M) - 1
    ph2 = len(M)
    dchunks = [c for c in (3, 2, 1, 0) if 15 * c + 14 >= nd]
    if len(dchunks) > 2 and nd % 15:
        dchunks[-1], dchunks[-2] = dchunks[-2], dchunks[-1]
    for c in dchunks:
        for r in own:
            for i in (range(14, -1, -1) if o.zig and r >= 4 else range(15)):
                if 15 * c + i >= nd: M.append((c, i, r))
    NM = len(M)
    assert NM == 480 and len(set(M)) == 480
    last_of = {r: max(k for k, m in enumerate(M) if m[2] == r) for r in range(8)}
    first_of = {r: min(k for k, m in enumerate(M) if m[2] == r) for r in range(8)}

    inst = {}
    use = []
    for k, (c, i, r) in enumerate(M):
        wk = ("w", 15 * c + i)
        xk = ("x", c, r + i, 1 if (k >= ph2 and c < 4 - o.keep) else 0)
        for key in (wk, xk):
            d = inst.setdefault(key, dict(first=k, last=k))
            d["last"] = k
        use.append((wk, xk))
    order = sorted(inst, key=lambda key: (inst[key]["first"], key[0] == "w"))
    reads = []
    for key in order:
        reads += [(key, 0)] if key[0] == "x" else [(key, 0), (key, 1)]
    pubs = []
    n0 = 0
    for T in o.pub:
        pubs.append([("w", n) for n in range(n0, n0 + T)])
        n0 += T
    assert n0 == 60
    pubs[0].append(("x", 0))
    src_of = lambda key: ("w", key[1]) if key[0] == "w" else ("x", key[1] >> 1)
    first_read = {}
    last_read = {}
    for t, (key, half) in enumerate(reads):
        first_read.setdefault(src_of(key), t)
        last_read[src_of(key)] = t
    tpub = [min(first_read[d] for d in g) for g in pubs]
    gi = max(i for i, t in enumerate(tpub) if t <= first_read[("x", 1)])
    pubs[gi].append(("x", 1))
    pub_at = {tpub[i]: pubs[i] for i in range(len(pubs))}
    dmas = [("x", 0, z) for z in range(5)]
    for n in range(60):
        dmas.append(("w", n))
        if o.xblk >= 0:
            if n == o.xblk: dmas += [("x", 1, z) for z in range(5)]
        elif o.x1at <= n < o.x1at + 5 * o.x1step and (n - o.x1at) % o.x1step == 0:
            dmas.append(("x", 1, (n - o.x1at) // o.x1step))
    excl = {}
    def reserve(k, tag):
        while k in excl: k += 1
        excl[k] = tag
        return k
    for it in (o.pfs.split(",") if o.pfs else []):
        p_, kind = it.split(":")
        if int(p_) >= 0: reserve(int(p_), ("pf", kind))
    kk = o.d0
    nd_ = 0
    for d in dmas[o.NP:]:
        g = int(kk + 0.5)
        while g in excl or g - 1 in excl: g += 1
        excl[g] = ("dma", d)
        nd_ += 1
        kk += o.pace0 if nd_ < o.n0 else o.pace
        if nd_ == o.n0: kk += o.pause
    klast = g
    kp = o.kpoison if o.kpoison > 0 else klast + 2
    reserve(kp, "E")
    for a in range(3): reserve(kp + 2 + o.pz * a, ("poison", a))
    reserve(o.kflag, "flag"); reserve(o.kpoll, "poll"); reserve(o.kpoll2, "poll2")
    if o.touch: reserve(kp + 1 if o.touch == 1 else o.touch, "touch")
    pos = [0] * len(reads)
    bpos = {}
    nxt = NM
    for t in range(len(reads) - 1, -1, -1):
        p = min(inst[reads[t][0]]["first"] - o.margin, nxt - 1, o.rcap)
        while p in excl: p -= 1
        pos[t] = p
        nxt = p
        if t in pub_at:
            p -= 1
            while p in excl or p - 1 in excl: p -= 1
            bpos[t] = p
            nxt = p
    prev = -1
    for t in range(len(reads)):
        if inst[reads[t][0]]["first"] < 8 and t < 10:
            pos[t] = -1
            continue
        if t in pub_at:
            p = max(bpos[t], prev + 1)
            while p in excl: p += 1
            bpos[t] = prev = p
        p = max(pos[t], prev + 1)
        while p in excl: p += 1
        pos[t] = prev = p
        assert pos[t] < inst[reads[t][0]]["first"], (t, reads[t], pos[t])
    for t in pub_at:
        if pos[t] >= 0: excl[bpos[t]] = ("bar", t)
    free = [(-10**9, s) for s in pool]
    for t, (key, half) in enumerate(reads):
        if half == 0:
            free.sort()
            assert free[0][0] + 1 <= pos[t], ("out of fragment registers", key, pos[t], free[0])
            _, s = free.pop(0)
            inst[key]["reg"] = s
            free.append((inst[key]["last"], s))

    vmq, lq = [], []
    state = dict(vm_done=-1, lg_done=-1, bar_lg=-1)
    def vm_wait_txt(labels):
        if o.nohs: labels = [l for l in labels if not (l in ("E", "flag", "poll", "poll2") or l[0] == "poison")]
        if not labels: return []
        idx = max(i for i, l in enumerate(vmq) if l in labels)
        for l in labels: assert vmq.count(l) == (5 if l[0] == "x" else 1), l
        if idx <= state["vm_done"]: return []
        state["vm_done"] = idx
        n = len(vmq) - 1 - idx
        assert n <= 63
        return [f"s_waitcnt vmcnt({n})"]
    published = set()
    def emit_pub(t, lg=None):
        n = 1
        w = vm_wait_txt(pub_at[t])
        if lg is not None:
            w = [(w[0] + " " if w else "s_waitcnt ") + f"lgkmcnt({lg})"]
        for x in w: A(x); n += 1
        A("s_barrier")
        state["bar_lg"] = state["lg_done"]
        published.add(t)
        if t == 0: stamp()
        return n
    def emit_read(t, gap):
        key, half = reads[t]
        n = 0
        if t in pub_at and t not in published:
            n += emit_pub(t)
        reg = inst[key]["reg"]
        if key[0] == "x":
            _, c, j, _ = key
            va = VA + 2 * (j >> 3) + (c & 1)
            A(f"ds_read_b128 {reg}, v{va} offset:{(c >> 1)*XPART + (j & 3)*XWV + ((j >> 2) & 1)*XCLS}")
        else:
            slot = key[1] % NR
            m = re.fullmatch(r"([va])\[(\d+):\d+\]", reg)
            b = int(m.group(2)) + 2 * half
            so_ = ((slot % 15) // 3) * 12288 + (slot % 3) * 1024 if o.m3 else (slot % 15) * 4096
            A(f"ds_read_b64_tr_b16 {m.group(1)}[{b}:{b+1}], v{VB + (slot >= 15)} offset:{so_ + half*512}")
        lq.append((key, gap))
        return n + 1
    def lg_wait(keys, k, emit=True):
        idx = max(i for i, l in enumerate(lq) if l[0] in keys)
        if idx <= state["lg_done"]: return 0 if emit else None
        old = [i for i, l in enumerate(lq) if l[1] <= k - o.lat]
        if old: idx = max(idx, old[-1])
        n = len(lq) - 1 - idx
        if n > 15:
            n = 15; idx = len(lq) - 1 - 15
        state["lg_done"] = idx
        if not emit: return n
        A(f"s_waitcnt lgkmcnt({n})")
        return 1
    def dma_txt(d):
        if d[0] == "x":
            _, p, z = d
            so = "0" if p == 0 else f"s{sP1}"
            return [f"s_add_u32 m0, s{sXb}, {p*XPART + z*1024}",
                    f"buffer_load_dwordx4 v{VXS+z}, s[{SX}:{SX+3}], {so} offen {o.xflags} lds"]
        c, i = divmod(d[1], 15)
        so = "0" if i == 0 else f"s{sTap+i}"
        if o.m3:
            return [f"s_add_u32 m0, s{sW3}, {RING0 + ((d[1] % NR) // 3)*12288}",
                    f"buffer_load_dwordx4 v{VWS+c}, s[{SW}:{SW+3}], {so} offen offset:{(i % 3)*1024} {o.wflags} lds"]
        return [f"s_add_u32 m0, s{sXl}, {RING0 + (d[1] % NR)*4096}",
                f"buffer_load_dwordx4 v{VWS+c}, s[{SW}:{SW+3}], {so} offen {o.wflags} lds"]
    def dma_ok(d):
        if d[0] == "w" and d[1] >= NR:
            t = last_read[("w", d[1] - NR)]
            return t < len(lq) and t <= state["bar_lg"]
        return True
    pfl = []
    for it in (o.pfs.split(",") if o.pfs else []):
        p_, kind = it.split(":")
        pfl.append((int(p_), kind))
    def pf_txt(kind):
        vmq.append(("pf", kind))
        r = VPF + [k_ for _, k_ in pfl].index(kind)
        srd = SX if kind == "x" else SW
        return [f"buffer_load_dword v{VPD}, v{r}, s[{srd}:{srd+3}], 0 offen {o.pfflags}"]

    t0, t1, t2, t3, t4, t5 = VT, VT + 1, VT + 2, VT + 3, VT + 4, VT + 5
    if o.map == 0:
        bKh, bTau, bMt, bPar, bBat = 2, 3, 4, 6, 7
    elif o.map == 1:
        bKh, bTau, bMt, bPar, bBat = 4, 3, 5, 7, 2
    else:
        bKh, bTau, bMt, bPar, bBat = 1, 0, 4, 6, 7
    sKh, sJ, sU, sBat, sSl, sX0 = 38, 40, 42, 63, 48, 46
    A(f".globl {name}")
    if o.align: A(".p2align 12")
    A(".p2align 8")
    A(f".type {name},@function")
    A(f"{name}:")
    stamp()
    if o.stamps: A("s_memrealtime s[96:97]")
    if o.diag: A("s_memrealtime s[94:95]")
    A("s_load_dwordx4 s[4:7], s[0:1], 0")
    A(f"s_load_dwordx2 s[{SO}:{SO+1}], s[0:1], 16")
    A(f"s_load_dwordx2 s[{SWS}:{SWS+1}], s[0:1], 32")
    A("s_cmp_ge_u32 s2, 256")
    A("s_cbranch_scc1 L_end")
    if o.bx: A(f"s_xor_b32 s2, s2, {o.bx}")
    if o.kprobe == 1:
        A("s_waitcnt lgkmcnt(0)")
        stamp()
    A(f"v_lshrrev_b32 v{t5}, 6, v0")
    A(f"v_and_b32 v{LANE}, 63, v0")
    A(f"v_readfirstlane_b32 s{sWave}, v{t5}")
    if o.codepf:
        A("s_getpc_b64 s[30:31]")
        if o.cshare:
            A("s_lshr_b32 s3, s2, 3")
            A(f"v_lshl_add_u32 v{t0}, s3, 2, v{t5}")
            A(f"v_min_u32 v{t0}, {o.codepf - 1}, v{t0}")
        else:
            A(f"v_min_u32 v{t0}, {o.codepf - 1}, v0")
        A(f"v_lshlrev_b32 v{t0}, 7, v{t0}")
        A(f"v_mov_b32 v{t1}, s31")
        A(f"v_add_co_u32 v{t0}, vcc, s30, v{t0}")
        A(f"s_bfe_u32 s{sKh}, s2, {0x10000 + bKh}")
        A(f"s_bfe_u32 s61, s2, {0x10000 + bTau}")
        A(f"v_addc_co_u32 v{t1}, vcc, 0, v{t1}, vcc")
        A(f"global_load_dword v{VPD}, v[{t0}:{t1}], off")
        vmq.append("code")
    else:
        A(f"s_bfe_u32 s{sKh}, s2, {0x10000 + bKh}")
        A(f"s_bfe_u32 s61, s2, {0x10000 + bTau}")
    A(f"s_lshl1_add_u32 s{sSig}, s{sKh}, s61")
    A(f"s_bfe_u32 s{sU}, s2, {0x20000 + bMt}")
    A(f"s_mul_i32 s{sU}, s{sU}, 125")
    A(f"s_sub_u32 s{sU}, s{sU}, s{sSig}")
    A(f"s_bfe_u32 s3, s2, {0x10000 + bPar}")
    A(f"s_lshl1_add_u32 s{sU}, s{sU}, s3")
    A(f"s_lshl_b32 s{sU}, s{sU}, 9")
    A(f"s_bfe_u32 s{sBat}, s2, {0x10000 + bBat}")
    A(f"s_mul_i32 s{sBat}, s{sBat}, 512000")
    A(f"s_lshl_b32 s{sXl}, s{sWave}, 10")
    A(f"s_lshl_b32 s3, s{sKh}, 8")
    A(f"s_add_u32 s3, s3, s{sU}")
    A(f"s_add_u32 s3, s3, s{sXl}")
    A(f"s_sub_u32 s{sX0}, s3, 14336")
    A(f"v_lshrrev_b32 v{t0}, 3, v{LANE}")
    A(f"v_and_b32 v{t4}, 7, v0")
    A(f"v_and_b32 v{t1}, 6, v{t0}")
    A(f"v_xor_b32 v{t1}, v{t1}, v{t4}")
    A(f"v_lshl_add_u32 v{t1}, v{t1}, 4, s{sX0}")
    A(f"v_lshl_add_u32 v{VXS}, v{t0}, 13, v{t1}")
    A(f"v_add_u32 v{t2}, 6, v{t0}")
    A(f"v_and_b32 v{t1}, 6, v{t2}")
    A(f"v_xor_b32 v{t1}, v{t1}, v{t4}")
    A(f"s_add_u32 s3, s{sX0}, 4096")
    A(f"v_lshl_add_u32 v{t1}, v{t1}, 4, s3")
    A(f"v_lshl_add_u32 v{VXS+3}, v{t2}, 13, v{t1}")
    A(f"v_cmp_gt_u32 vcc, 2, v{t0}")
    A(f"v_add_u32 v{t1}, 0x20000, v{VXS}")
    A(f"v_add_u32 v{t2}, 0xffff0000, v{VXS+3}")
    A(f"v_cndmask_b32 v{VXS+2}, v{t2}, v{t1}, vcc")
    A(f"v_add_u32 v{VXS+1}, 0x10000, v{VXS}")
    A(f"s_mul_i32 s{sXb}, s{sWave}, {XWV}")
    if o.m3: A(f"s_mul_i32 s{sW3}, s{sWave}, 3072")
    A(f"s_lshl_b32 s{sSl}, s{sKh}, 8")
    A(f"s_add_u32 s{sSl}, s{sSl}, s61")
    if o.map == 3:
        A("s_bfe_u32 s3, s2, 0x10002")
        A(f"s_bfe_u32 s{sJ}, s2, 0x10003")
        A(f"s_lshl1_add_u32 s{sJ}, s3, s{sJ}")
    else:
        A(f"s_and_b32 s{sJ}, s2, 3" if o.map != 2 else f"s_bfe_u32 s{sJ}, s2, 0x20002")
    A(f"s_lshl2_add_u32 s{sSl}, s{sSl}, s{sJ}")
    A(f"s_lshl_b32 s{sSl}, s{sSl}, 7")
    A(f"s_lshl_b32 s3, s{sWave}, 13")
    A(f"s_add_u32 s{sSl}, s{sSl}, s3")
    A(f"s_and_b32 s3, s{sWave}, 1")
    A("s_lshl_b32 s3, s3, 2")
    A(f"v_and_or_b32 v{t1}, v{t0}, 2, s3")
    A(f"v_xor_b32 v{t1}, v{t1}, v{t4}")
    A(f"v_lshl_add_u32 v{t1}, v{t1}, 4, s{sSl}")
    A(f"v_lshl_add_u32 v{VWS}, v{t0}, 10, v{t1}")
    A(f"s_mov_b32 s{SX+2}, 512000")
    A(f"s_mov_b32 s{SX+3}, 0x20000")
    A(f"s_mov_b32 s{SW+2}, 3932160")
    A(f"s_mov_b32 s{SW+3}, 0x20000")
    mid = []
    B = mid.append
    B(f"v_cmp_gt_u32 vcc, 4, v{t0}")
    B(f"v_add_u32 v{VXS+4}, 0x10000, v{VXS+3}")
    B(f"v_mov_b32 v{t5}, {OOB}")
    B(f"v_cndmask_b32 v{VXS+4}, v{t5}, v{VXS+4}, vcc")
    assert o.map != 1 and len(pfl) <= 4
    for n_, (p_, kind) in enumerate(pfl):
        r = VPF + n_
        if kind[0] == "w":
            c0, nc = int(kind[1]), len(kind) - 1
            if n_ == 0:
                B(f"s_lshr_b32 s{sT}, s2, {bMt}")
                B(f"s_lshl_b32 s{sT}, s{sT}, 18")
                B(f"s_add_u32 s{sT}, s{sT}, s{sSl}")
                if o.pfpair:
                    B(f"s_bfe_u32 s{sT2}, s2, 0x10003")
                    B(f"s_mul_i32 s{sT2}, s{sT2}, {4096 - 128}")
                    B(f"s_add_u32 s{sT}, s{sT}, s{sT2}")
                    B(f"v_and_b32 v{t3}, 1, v{t4}")
                    B(f"v_lshl_add_u32 v{t3}, v{t3}, 7, s{sT}")
                    B(f"v_lshrrev_b32 v{t2}, 1, v{t4}")
                    B(f"v_lshl_add_u32 v{t3}, v{t2}, 10, v{t3}")
                else:
                    B(f"v_lshl_add_u32 v{t3}, v{t4}, 10, s{sT}")
                B(f"v_lshl_add_u32 v{t3}, v{t0}, 15, v{t3}")
            B(f"v_cmp_gt_u32 vcc, {nc}, v{t0}")
            B(f"v_add_u32 v{r}, {c0*32768}, v{t3}")
            B(f"s_nop 0")
            B(f"v_cndmask_b32 v{r}, v{t5}, v{r}, vcc")
        else:
            B(f"s_bfe_u32 s{sT2}, s2, {0x10000 + (3 if o.map >= 2 else bTau)}")
            B(f"s_lshl_b32 s{sT2}, s{sT2}, 12")
            B(f"s_add_u32 s{sT2}, s{sT2}, s{sX0}")
            B(f"v_cmp_gt_u32 vcc, 18, v{LANE}")
            B(f"v_lshl_add_u32 v{r}, v{LANE}, 13, s{sT2}")
            B(f"v_add_u32 v{r}, 128, v{r}")
            B(f"v_cndmask_b32 v{r}, v{t5}, v{r}, vcc")
    npfmid = len(mid)
    for i in range(1, 15): B(f"s_mov_b32 s{sTap+i}, {i*262144 - ((i % 3)*1024 if o.m3 else 0)}")
    B(f"v_and_b32 v{t0}, 15, v{LANE}")
    B(f"v_lshrrev_b32 v{t1}, 4, v{LANE}")
    for d in range(3):
        if d: B(f"v_add_u32 v{t2}, {d}, v{t0}")
        md = t2 if d else t0
        B(f"v_and_b32 v{t3}, 6, v{md}")
        B(f"v_xor_b32 v{t3}, v{t3}, v{t1}")
        B(f"v_lshlrev_b32 v{t3}, 4, v{t3}")
        B(f"v_lshl_add_u32 v{VA+2*d}, v{md}, 7, v{t3}")
    B(f"v_lshrrev_b32 v{t2}, 2, v{t0}")
    if o.m3: B(f"v_mad_u32_u24 v{t2}, v{t1}, 24, v{t2}")
    else: B(f"v_lshl_add_u32 v{t2}, v{t1}, 3, v{t2}")
    B(f"v_bfe_u32 v{t3}, v{LANE}, 3, 2")
    B(f"v_xor_b32 v{t3}, s{sWave}, v{t3}")
    B(f"v_lshlrev_b32 v{t3}, 5, v{t3}")
    B(f"v_lshl_add_u32 v{t3}, v{t2}, 7, v{t3}")
    B(f"v_and_b32 v{t2}, 3, v{LANE}")
    B(f"v_lshl_add_u32 v{t3}, v{t2}, 3, v{t3}")
    B(f"v_add_u32 v{VB}, {RING0}, v{t3}")
    B(f"v_add_u32 v{VB+1}, {RING0 + 15*4096}, v{t3}")
    for d in range(3): B(f"v_xor_b32 v{VA+2*d+1}, 64, v{VA+2*d}")
    for c in range(1, 4): B(f"v_add_u32 v{VWS+c}, {c*32768}, v{VWS}")
    B(f"s_movk_i32 s{sP1}, 128")
    late = []
    B = late.append
    B([f"s_add_u32 s{SO}, s{SO}, s{sBat}", f"s_addc_u32 s{SO+1}, s{SO+1}, 0"])
    B(f"s_mov_b32 s{SO+2}, 512000")
    B(f"s_mov_b32 s{SO+3}, 0x20000")
    B(f"s_mov_b32 s{SWS+2}, 0x2000000")
    B(f"s_mov_b32 s{SWS+3}, 0x20000")
    B(f"s_lshr_b32 s3, s2, {bMt}")
    if o.map != 1:
        B(f"s_lshl2_add_u32 s3, s3, s{sJ}")
    else:
        B("s_and_b32 s4, s2, 7")
        B("s_lshl3_add_u32 s3, s3, s4")
    B(f"s_lshl2_add_u32 s4, s3, s{sWave}")
    B("s_mul_i32 s4, s4, 640")
    B(f"s_add_u32 s{sRec}, s4, {(3 << 20) + 4096}")
    B("s_lshl_b32 s3, s3, 14")
    B(f"s_add_u32 s3, s3, s{sXl}")
    B(f"s_lshl_b32 s5, s{sSig}, 12")
    B("s_add_u32 s5, s5, s3")
    for a in range(3):
        B(f"s_sub_u32 s4, s{sSig}, {a+1}")
        B("s_and_b32 s4, s4, 3")
        B("s_lshl_b32 s4, s4, 12")
        B(f"s_add_u32 s{sSend+a}, s4, s3")
        B([f"s_cmp_le_u32 s{sSig}, {2-a}", "s_cselect_b32 s4, 8, 0"])
        B(f"s_add_u32 s{sRecv+a}, s5, s4")
        if a < 2:
            B("s_add_u32 s3, s3, 0x100000")
            B("s_add_u32 s5, s5, 0x100000")
    B(f"v_lshlrev_b32 v{VE}, 4, v{LANE}")
    for q in range(4): B(f"v_mov_b32 v{VIN+q}, -1")
    B(f"v_mov_b32 v{VEP}, 0")
    B(f"v_mov_b32 v{t3}, {OOB}")
    B(f"s_lshl_b32 s4, s{sSig}, 7")
    B(f"v_add_u32 v{t2}, s4, v{VE}")
    B(f"v_cmp_gt_u32 vcc, 8, v{LANE}")
    B(f"v_and_b32 v{VFP}, 3, v{LANE}")
    B(f"v_lshlrev_b32 v{VFP}, 7, v{VFP}")
    B(f"v_cndmask_b32 v{VFL}, v{t3}, v{t2}, vcc")
    B(f"v_mov_b32 v{VEP+1}, 0")
    B(f"v_mov_b32 v{VEP+2}, 0")
    if o.olds or o.touch:
        vo = VO if o.olds else VOR
        B(f"s_lshl_b32 s3, s{sJ}, 7")
        B(f"s_add_u32 s3, s3, s{sU}")
        B("s_add_u32 s3, s3, 3072")
        B(f"v_lshrrev_b32 v{t2}, {3 if o.olds else 0}, v{LANE}")
        B(f"v_lshl_add_u32 v{t2}, s{sWave}, 3, v{t2}")
        if o.olds:
            B(f"v_lshl_add_u32 v{vo}, v{t4}, 4, s3")
            B(f"v_lshl_add_u32 v{vo}, v{t2}, 12, v{vo}")
            B([f"s_cmp_eq_u32 s{sSig}, 3", "s_cselect_b32 s3, 32, 31"])
            B([f"s_cmp_eq_u32 s{sSig}, 3", f"s_cselect_b32 s{sMask+1}, -1, 0x7fffffff"])
            B(f"v_cmp_gt_u32 vcc, s3, v{t2}")
            B(f"v_mul_u32_u24 v{VOR}, {OROW}, v{t2}")
            B(f"s_mov_b32 s{sMask}, -1")
            B(f"v_cndmask_b32 v{vo}, v{t3}, v{vo}, vcc")
            B(f"v_lshl_add_u32 v{VOR}, v{t4}, 4, v{VOR}")
            B(f"v_add_u32 v{VOR}, {OBASE}, v{VOR}")
            B(f"s_lshl_b32 s3, s{sWave}, 5")
            B(f"s_add_u32 s3, s3, {OBASE}")
            B(f"v_lshl_add_u32 v{t2}, v{t1}, 3, s3")
            B(f"v_mul_u32_u24 v{VO+1}, {2*OROW}, v{t0}")
            B(f"v_add_u32 v{VO+1}, v{VO+1}, v{t2}")
        else:
            B(f"v_cmp_gt_u32 vcc, 8, v{LANE}")
            B(f"v_lshl_add_u32 v{vo}, v{t2}, 12, s3")
            B("s_nop 0")
            B(f"v_cndmask_b32 v{vo}, v{t3}, v{vo}, vcc")
    if not o.olds:
        B(f"s_lshl2_add_u32 s3, s{sJ}, s{sWave}")
        B("s_lshl_b32 s3, s3, 5")
        B(f"s_add_u32 s3, s3, s{sU}")
        B("s_add_u32 s3, s3, 3072")
        B(f"v_lshl_add_u32 v{t2}, v{t1}, 3, s3")
        B(f"v_lshl_add_u32 v{VO}, v{t0}, 13, v{t2}")
        B([f"s_cmp_eq_u32 s{sSig}, 3", "s_cselect_b32 s3, 16, 15"])
        B([f"s_cmp_eq_u32 s{sSig}, 3", f"s_cselect_b32 s{sMask+1}, -1, 0x7fffffff"])
        B(f"v_cmp_gt_u32 vcc, s3, v{t0}")
        B(f"v_add_u32 v{VO+1}, 4096, v{VO}")
        B(f"s_mov_b32 s{sMask}, -1")
        B(f"v_cndmask_b32 v{VO+1}, v{t3}, v{VO+1}, vcc")
    B(f"s_mov_b32 s3, 0x4038aa3b")
    B([f"s_bitcmp1_b32 s{sSig}, 0", f"s_cselect_b32 s{sC1}, 0xbfb8aa3b, s3"])
    B([f"s_bitcmp1_b32 s{sSig}, 0", f"s_cselect_b32 s{sA1}, 0, 1.0"])
    B([f"s_bitcmp1_b32 s{sSig}, 0", f"s_cselect_b32 s{sA2}, 1.0, 0"])
    if o.stamps: B("s_mov_b32 s43, 0")
    di = 0
    pfq = list(pfl)
    nmid0 = len(mid)
    for _ in range(min(o.premid, len(mid))): A(mid.pop(0))
    t_ = dma_txt(dmas[0])[0]
    A(t_); state["m0"] = t_
    if o.kprobe == 2: stamp()
    A("s_waitcnt lgkmcnt(0)")
    stamp()
    A(f"s_add_u32 s{SX}, s4, s{sBat}")
    A(f"s_addc_u32 s{SX+1}, s5, 0")
    A(f"s_mov_b32 s{SW}, s6")
    A(f"s_mov_b32 s{SW+1}, s7")
    if o.latemix:
        for it in late: mid += [it] if isinstance(it, str) else ["\n".join(it)]
        nmid0 += len(late)
        late = []
    if o.pfonly:
        for x in mid[:npfmid]: A(x)
        for _, kind in pfl:
            for x in pf_txt(kind): A(x)
        A("s_waitcnt vmcnt(0)")
        A("s_endpgm")
    while di < o.NP:
        while pfq and pfq[0][0] <= di - 1000:
            while nmid0 - len(mid) < npfmid: A(mid.pop(0))
            for x in pf_txt(pfq.pop(0)[1]): A(x)
        tx = dma_txt(dmas[di])
        if dmas[di][0] == "w" and dmas[di][1] > 0:
            while nmid0 - len(mid) < npfmid + dmas[di][1]: A(mid.pop(0))
        if tx[0] != state.get("m0"):
            A(tx[0]); state["m0"] = tx[0]
            if mid: A(mid.pop(0))
        A(tx[1])
        vmq.append(dmas[di][:2]); di += 1
        if di in o.pstat: stamp()
        for _ in range(o.midn if di < o.NPa else len(mid)):
            if mid: A(mid.pop(0))
        if di == max(o.NPa, o.lateat) and o.latepro:
            for it in late:
                for x in ([it] if isinstance(it, str) else it): A(x)
            late = []
        if di == o.itat and o.itouch:
            A("s_mov_b64 exec, 0")
            if o.partouch:
                for n_ in range(1, o.itouch + 1):
                    A(f"s_cmp_eq_u32 s{sWave}, {n_}")
                    A(f"s_cbranch_scc1 L_touch{n_}")
            A("s_branch L_touch0")
            A("L_touched:")
            A("s_mov_b64 exec, -1")
    assert not mid
    while pfq and pfq[0][0] < 0:
        for x in pf_txt(pfq.pop(0)[1]): A(x)

    side = []
    hq = []
    slow = []
    def vm(txt, label):
        def f():
            if o.nohs and (label in ("E", "flag", "poll", "poll2") or label[0] == "poison"): return []
            vmq.append(label); return [txt]
        f.vm = True
        return f
    def wait(labels):
        return lambda: vm_wait_txt(labels)
    ws = f"s[{SWS}:{SWS+3}]"
    side.append((-1, [it if isinstance(it, str) else (lambda it=it: it) for it in late]))
    fixed = {}
    fixed["E"] = vm(f"buffer_load_dword v{VEP}, v{VEP}, {ws}, s{sRec} offen sc1", "E")
    for a in range(3):
        fixed[("poison", a)] = vm(f"buffer_store_dwordx4 v[{VIN}:{VIN+3}], v{VE}, {ws}, s{sSend+a} offen {o.sflags}", ("poison", a))
    side.append((o.kflag - 12, [wait(["E"]), f"v_add_u32 v{VEP}, {0 if o.nohs else EPC}, v{VEP}", lambda: state.update(ep=1) or []]))
    def flag():
        assert state.get("ep")
        return vm_wait_txt([("poison", 2)]) + vm(f"buffer_store_dwordx4 v[{VEP}:{VEP+3}], v{VFL}, {ws}, s{sRec} offen offset:128 {o.sflags}", "flag")()
    fixed["flag"] = flag
    fixed["poll"] = vm(f"buffer_load_dword v{VFV}, v{VFP}, {ws}, s{sRec} offen offset:128 sc1", "poll")
    for _, kind in pfq: fixed[("pf", kind)] = (lambda kind=kind: pf_txt(kind))
    ld_flag = lambda r: f"buffer_load_dword v{r}, v{VFP}, {ws}, s{sRec} offen offset:128 sc1"
    ld_in = lambda a: f"buffer_load_dwordx4 v[{VIN+4*a}:{VIN+4*a+3}], v{VE}, {ws}, s{sRecv+a} offen sc1"
    fixed["poll2"] = vm(ld_flag(VFV + 1), "poll2")
    fixed["touch"] = vm(f"buffer_load_dword v{VPD}, v{VFP if o.t1 else VO if o.olds else VOR}, s[{SO}:{SO+3}], 0 offen", "touch")
    spin = lambda inc: ([f"s_add_u32 s43, s43, {inc}"] if o.stamps else []) + [
        f"s_add_u32 s{sSpin}, s{sSpin}, 1", f"s_cmp_gt_u32 s{sSpin}, {o.spin}", "s_cbranch_scc1 L_end"]
    side.append((o.kcheck, [f"s_mov_b32 s{sSpin}, 0", wait(["poll"]),
                            lambda: state.update(flagok=1) or [f"v_cmp_ne_u32 s[{sBad}:{sBad+1}], v{VFV}, v{VEP}"]]))
    def send(a):
        b0, b1 = ACC + 4 * a, ACC + 4 * (a + 4)
        p = []
        for q in range(4): p.append(f"v_mul_f32 v{b0+q}, s{sC1}, v{b0+q}")
        p.append(f"v_cvt_pk_bf16_f32 v{b0}, v{b0}, v{b0+1}")
        p.append(f"v_cvt_pk_bf16_f32 v{b0+1}, v{b0+2}, v{b0+3}")
        for q in range(2): p.append(f"v_min_u32 v{b0+q}, -2, v{b0+q}")
        side.append((last_of[a], ["s_nop 1"] * 3 + p))
        p = []
        for q in range(4): p.append(f"v_mul_f32 v{b1+q}, s{sC1}, v{b1+q}")
        p.append(f"v_cvt_pk_bf16_f32 v{b0+2}, v{b1}, v{b1+1}")
        p.append(f"v_cvt_pk_bf16_f32 v{b0+3}, v{b1+2}, v{b1+3}")
        for q in range(2, 4): p.append(f"v_min_u32 v{b0+q}, -2, v{b0+q}")
        p.append(vm(f"buffer_store_dwordx4 v[{b0}:{b0+3}], v{VE}, {ws}, s{sSend+a} offen {o.sflags}", ("send", a)))
        side.append((last_of[a + 4], ["s_nop 1"] * 3 + p))
    def recv(a, k):
        hq.append((k, vm(ld_in(a), ("recv", a))))
    def chk(a, x, prev=None):
        r0 = VIN + 4 * a
        c = [f"v_max_u32 v{x+1}, v{r0+2}, v{r0+3}", f"v_cndmask_b32 v{x+1}, 0, v{x+1}, s[{sMask}:{sMask+1}]"]
        if prev is None:
            return c + [f"v_max3_u32 v{x}, v{x+1}, v{r0}, v{r0+1}"]
        return c + [f"v_max3_u32 v{x+1}, v{x+1}, v{r0}, v{r0+1}", f"v_max_u32 v{x}, v{x}, v{x+1}"]
    send(0); recv(0, o.kr[0])
    send(2); recv(2, o.kr[1])
    send(1); recv(1, o.kr[2])
    kb = [k_ for k_ in o.kb if k_ > 0]
    for n_, k_ in enumerate(kb): hq.append((k_, vm(ld_in(1), ("bak", n_))))
    hq.sort(key=lambda x: x[0])
    TA, TB, X = VT + 8, VT + 16, VT
    unpack = lambda a, d: [t for q in range(4) for t in
                           (f"v_lshlrev_b32 v{d+2*q}, 16, v{VIN+4*a+q}", f"v_and_b32 v{d+2*q+1}, 0xffff0000, v{VIN+4*a+q}")]
    other = unpack(2, TB)
    for q in range(8): other.append(f"v_add_f32 v{TA+q}, v{TA+q}, v{TB+q}")
    for q in range(8): other.append(f"v_exp_f32 v{TA+q}, v{TA+q}")
    for q in range(8): other.append(f"v_add_f32 v{TA+q}, 1.0, v{TA+q}")
    for q in range(8): other.append(f"v_rcp_f32 v{TA+q}, v{TA+q}")
    for q in range(8): other.append(f"v_fma_f32 v{TB+q}, v{TA+q}, -2.0, s{sA2}")
    for q in range(8): other.append(f"v_mul_f32 v{TA+q}, s{sA1}, v{TA+q}")
    eupd = vm(f"buffer_store_dwordx4 v[{VEP}:{VEP+3}], v{VFL}, {ws}, s{sT2} offen {o.eflags}" if o.ex4 else
              f"buffer_store_dword v{VEP}, v{VFL}, {ws}, s{sT2} offen {o.eflags}", "Eupd")
    side.append((o.kr[3], [wait([("recv", 0)])] + chk(0, X) + unpack(0, TA)))
    side.append((o.kr[4], [wait([("recv", 2), "poll2"])] + chk(2, X, X) + [f"v_cmp_eq_u32 vcc, -1, v{X}",
                 lambda: state.update(ochk=1, nhq=len(hq)) or [f"s_or_b64 s[{sBad}:{sBad+1}], s[{sBad}:{sBad+1}], vcc", "s_cbranch_scc1 L_again", "L_backo:"]] + ([eupd] if o.eearly else []) + other))
    slow += ["L_again:", f"v_cmp_ne_u32 vcc, v{VFV+1}, v{VEP}", "s_cbranch_vccz L_again1", ld_flag(VFV + 1)] + spin(1) + [
             "s_waitcnt vmcnt(0)", "s_branch L_again", "L_again1:", ld_in(0), ld_in(2), ld_in(1), "s_branch L_backo"]
    nlate = sum(1 for k_ in kb + [o.kr[2]] if k_ > o.kr[4] + 4)
    po = pack(unpack(0, TA) + other)
    slow += ["L_rec:", f"s_waitcnt vmcnt({1 + nlate + o.eearly})", "L_rec2:"] + chk(0, X) + chk(2, X, X) + [
             f"v_cmp_eq_u32 vcc, -1, v{X}", "s_cbranch_vccnz L_rec1", ld_in(1)] + po + ["s_waitcnt vmcnt(1)", "s_branch L_slows2" if kb else "s_branch L_slows3"]
    slow += ["L_rec1:", ld_in(0), ld_in(2)] + spin(256) + ["s_waitcnt vmcnt(0)", "s_branch L_rec2"]
    if not kb:
        slow += ["L_slows3:"] + chk(1, X) + [f"v_cmp_eq_u32 vcc, -1, v{X}", "s_cbranch_vccz L_backs", "s_waitcnt vmcnt(0)", "s_branch L_slows2"]
    slow += ["L_slows:", ld_in(1)] + spin(65536) + [f"s_waitcnt vmcnt({len(kb)})", "L_slows2:"] + chk(1, X) + [
             f"v_cmp_eq_u32 vcc, -1, v{X}", "s_cbranch_vccnz L_slows", "s_branch L_backs"]
    U = ACC + 16
    fin = [wait([("recv", 1)])] + chk(1, X) + [f"v_cmp_eq_u32 vcc, -1, v{X}", lambda: ["s_cbranch_vccnz L_slows", "L_backs:"]] + unpack(1, U)
    regs = [(ACC + 4 * r + q, 4 * h + q) for h, r in enumerate(own) for q in range(4)]
    if o.finord == 0:
        for b, e in regs: fin.append(f"v_fma_f32 v{b}, v{b}, s{sC1}, v{U+e}")
        for b, e in regs: fin.append(f"v_exp_f32 v{b}, v{b}")
        for b, e in regs: fin.append(f"v_add_f32 v{b}, 1.0, v{b}")
    else:
        up = fin[-8:]; fin = fin[:-8]
    for h, r in enumerate(own):
        b = ACC + 4 * r
        if o.finord:
            fin += up[4*h:4*h+4]
            for q in range(4): fin.append(f"v_fma_f32 v{b+q}, v{b+q}, s{sC1}, v{U+4*h+q}")
            for q in range(4): fin.append(f"v_exp_f32 v{b+q}, v{b+q}")
            for q in range(4): fin.append(f"v_add_f32 v{b+q}, 1.0, v{b+q}")
        for q in range(4): fin.append(f"v_rcp_f32 v{b+q}, v{b+q}")
        for q in range(4): fin.append(f"v_fma_f32 v{b+q}, v{b+q}, v{TB+4*h+q}, v{TA+4*h+q}")
        fin.append(f"v_cvt_pk_bf16_f32 v{b}, v{b}, v{b+1}")
        fin.append(f"v_cvt_pk_bf16_f32 v{b+1}, v{b+2}, v{b+3}")
        if o.olds:
            fin.append(f"ds_write_b64 v{VO+1}, v[{b}:{b+1}] offset:{h*OROW}")
        else:
            fin.append(vm(f"buffer_store_dwordx2 v[{b}:{b+1}], v{VO+h}, s[{SO}:{SO+3}], 0 offen {o.oflags}", ("out", h)))
    if o.olds:
        fin += ["s_waitcnt lgkmcnt(0)", "s_barrier", f"ds_read_b128 v[{ACC}:{ACC+3}], v{VOR}", "s_waitcnt lgkmcnt(0)",
                vm(f"buffer_store_dwordx4 v[{ACC}:{ACC+3}], v{VO}, s[{SO}:{SO+3}], 0 offen {o.oflags}", ("out", 0))]
    if o.tstat: fin = [stamp_txt, fin[0], stamp_txt] + fin[1:]
    side.append((10**5, fin))
    side.append((o.kcheck - 8, [lambda: [f"s_cmp_lg_u32 s{sSig}, 0", f"s_cselect_b32 s{sT2}, 0x2000000, s{sRec}"]]))
    if not o.eearly: side.append((o.keupd, [eupd]))
    side.sort(key=lambda x: x[0])
    sq = []
    for k, p in side:
        for it in p: sq.append((k, it))
    def cost(t):
        if t.endswith(":"): return 0
        return 2 if (t.split()[0] in TRANS or t == "s_nop 1") else 1

    dgaps = sorted(g for g, tag in excl.items() if tag[0] == "dma")
    def set_m0():
        t_ = dma_txt(excl[dgaps[0]][1])[0]
        if t_ == state.get("m0"): return 0
        A(t_); state["m0"] = t_
        return 1
    set_m0()
    rt = 0
    while rt < len(reads) and pos[rt] < 0:
        emit_read(rt, max(0, rt - 2)); rt += 1
    info = []
    rgaps = set(pos)
    def needs_wait(kk):
        iss = [ii for ii, l in enumerate(lq) if l[0] in use[kk]]
        return max(iss) > state["lg_done"]
    def all_issued(kk):
        return all(sum(1 for l in lq if l[0] == key) == (2 if key[0] == "w" else 1) for key in use[kk])
    for k in range(NM):
        c, i, r = M[k]
        wk, xk = use[k]
        lg_wait((wk, xk), k)
        acc = f"v[{ACC+4*r}:{ACC+4*r+3}]"
        A(f"v_mfma_f32_16x16x32_bf16 {acc}, {inst[wk]['reg']}, {inst[xk]['reg']}, {'0' if k == first_of[r] else acc}")
        used = 0
        if k in excl:
            tag = excl[k]
            if tag[0] == "dma":
                d = tag[1]
                assert d == dmas[di] and dma_ok(d), (k, d)
                tx = dma_txt(d)
                set_m0()
                A(tx[1]); vmq.append(d[:2]); di += 1
                dgaps.pop(0)
                info.append(f"{d[0]}{d[1]}@{k}")
            elif tag[0] == "bar":
                emit_pub(tag[1])
            else:
                for x in fixed[tag](): A(x)
            assert not (rt < len(reads) and pos[rt] <= k)
        else:
            while rt < len(reads) and pos[rt] <= k:
                used += emit_read(rt, k); rt += 1
            kk = k + 1
            keys = ()
            while kk < NM:
                if all_issued(kk) and needs_wait(kk): keys += use[kk]
                if kk not in excl: break
                kk += 1
            barw = k + 1 in excl and excl[k + 1][0] == "bar"
            if keys or barw: used += 1
            while used < 2:
                if dgaps and dma_txt(excl[dgaps[0]][1])[0] != state.get("m0") and (
                        used == 0 or not any(g_ not in excl and g_ not in rgaps for g_ in range(k + 1, dgaps[0]))):
                    used += set_m0()
                    continue
                if hq and hq[0][0] <= k and state.get("flagok"):
                    if used: break
                    for x in hq.pop(0)[1](): A(x)
                    used = 2
                    continue
                if sq and sq[0][0] <= k:
                    it = sq[0][1]
                    if isinstance(it, str) and cost(it) + used > 2: break
                    if not isinstance(it, str) and used and (sq[0][0] < 0 or getattr(it, "vm", False)): break
                    sq.pop(0)
                    for x in ([it] if isinstance(it, str) else it()):
                        A(x); used += cost(x)
                    if getattr(it, "vm", False): used = 2
                    continue
                break
            w = vm_wait_txt(pub_at[excl[k + 1][1]]) if barw else []
            if keys:
                n = lg_wait(keys, k + 1, False)
                w = [(w[0] + " " if w else "s_waitcnt ") + f"lgkmcnt({n})"]
            for x in w: A(x)
        if o.stamps and k in o.stat: stamp()
    assert di == len(dmas) and rt == len(reads), (di, len(dmas), rt)
    A(f"; tail: {len(sq)} side instructions left")
    if o.verbose:
        print("dma issue:", " ".join(info), file=sys.stderr)
        print("publish:", " ".join(f"{bpos[t]}:{g[0][1]}-{max(x[1] for x in g if x[0]=='w')}{'+x' if any(x[0]=='x' for x in g) else ''}" for t, g in sorted(pub_at.items())), file=sys.stderr)
        print("pair_done", pair_done, "tail", len(sq), file=sys.stderr)
    if o.olds:
        assert not o.m3 and max(last_read[("w", 30)], last_read[("w", 31)]) <= state["bar_lg"]
    assert not hq and state.get("ochk") and state["nhq"] == nlate, (state, nlate)
    A(f"s_cmp_lg_u64 s[{sBad}:{sBad+1}], 0")
    A("s_cbranch_scc1 L_rec")
    tl = []
    while sq:
        it = sq.pop(0)[1]
        tl += [it] if isinstance(it, str) else it()
    for x in pack(tl): A(x)
    if o.stamps and o.diag:
        stamp()
        A("s_waitcnt vmcnt(0)")
        stamp()
    elif o.stamps:
        stamp()
        A("s_waitcnt vmcnt(0)")
        stamp()
        A("s_memrealtime s[98:99]")
        A("s_waitcnt lgkmcnt(0)")
        A("s_lshl_b32 s3, s2, 2")
        A(f"s_add_u32 s3, s3, s{sWave}")
        A("s_lshl_b32 s3, s3, 7")
        A("s_add_u32 s3, s3, 0x1000000")
        A("v_mov_b32 v30, s3")
        assert STAMP + 2 * nst[0] <= 94
        for b in range(1, nst[0]):
            A(f"s_sub_u32 s3, s{STAMP+2*b}, s{STAMP}")
            A("v_mov_b32 v31, s3")
            A(f"buffer_store_dword v31, v30, {ws}, 0 offen offset:{4*b}")
        A(f"s_getreg_b32 s3, hwreg(HW_REG_XCC_ID)")
        A(f"v_mov_b32 v31, s3")
        A(f"buffer_store_dword v31, v30, {ws}, 0 offen offset:{4*28}")
        A(f"v_mov_b32 v31, {nst[0] + 256*o.rt}")
        A(f"buffer_store_dword v31, v30, {ws}, 0 offen offset:0")
        A(f"v_mov_b32 v31, s43")
        A(f"buffer_store_dword v31, v30, {ws}, 0 offen offset:{4*29}")
        A("v_mov_b32 v31, s96")
        A(f"buffer_store_dword v31, v30, {ws}, 0 offen offset:{4*30}")
        A("v_mov_b32 v31, s98")
        A(f"buffer_store_dword v31, v30, {ws}, 0 offen offset:{4*31}")
    if o.diag:
        A("s_waitcnt vmcnt(0) lgkmcnt(0)")
        A("s_mov_b32 s3, 0")
        d = o.diag.split(":")
        if d[0] == "xcc":
            A("s_getreg_b32 s3, hwreg(HW_REG_XCC_ID)")
            A("s_sub_u32 s3, s3, s2")
            A("s_and_b32 s3, s3, 7")
            A("s_mul_i32 s3, s3, 500")
        if d[0] == "only":
            A("s_and_b32 s3, s2, 7")
            A(f"s_cmp_eq_u32 s3, {d[1]}")
            A("s_cselect_b32 s3, 1000, 0")
        if d[0] == "enc":
            A(f"s_sub_u32 s3, s{STAMP+2*int(d[2])}, s{STAMP+2*int(d[1])}")
            A(f"s_mul_i32 s3, s3, {d[3]}")
            A("s_min_u32 s3, s3, 20000")
            if len(d) > 4:
                A(f"s_cmp_eq_u32 s2, {d[4]}")
                A("s_cselect_b32 s3, s3, 0")
        A("s_add_u32 s3, s3, 4000")
        A("L_spin:")
        A("s_memrealtime s[4:5]")
        A("s_waitcnt lgkmcnt(0)")
        A("s_sub_u32 s6, s4, s94")
        A("s_cmp_lt_u32 s6, s3")
        A("s_cbranch_scc1 L_spin")
    A("L_end:")
    A("s_endpgm")
    L.extend(slow)
    L = [y for x in L for y in x.split("\n")]
    if o.abl:
        first = next(i for i, l in enumerate(L) if l.startswith("v_mfma"))
        end = next(i for i, l in enumerate(L) if l.startswith("; tail"))
        K = []
        for i, l in enumerate(L):
            if first < i < end:
                if "b" in o.abl and l == "s_barrier": continue
                if "d" in o.abl and l.endswith(" lds"): continue
                if "w" in o.abl and l.startswith("s_waitcnt vmcnt"):
                    l = re.sub(r"vmcnt\(\d+\)", "", l)
                    if l.strip() == "s_waitcnt": continue
                if "l" in o.abl and l.startswith("s_waitcnt lgkmcnt"): continue
                if "r" in o.abl and l.startswith("ds_read"): continue
                if "x" in o.abl and (" sc1" in l or l.startswith("s_cbranch")): continue
                if "v" in o.abl and l.startswith("v_") and not l.startswith("v_mfma") and not l.startswith("v_cmp"): continue
            if "x" in o.abl and i >= end and (l.startswith("s_cbranch_vccnz L_slows") or l.startswith("s_cbranch_scc1 L_rec")): continue
            K.append(l)
        L = K
    return fix_hazards(L), NV, RING0 + NR * 4096

def disasm(lines):
    import subprocess, tempfile
    d = tempfile.mkdtemp()
    open(d + "/a.s", "w").write('.amdgcn_target "amdgcn-amd-amdhsa--gfx950"\n.text\n' + "\n".join(lines) + "\n")
    subprocess.run(["clang", "-x", "assembler", "-target", "amdgcn-amd-amdhsa", "-mcpu=gfx950", "-c", d + "/a.s", "-o", d + "/a.o"], check=True)
    dis = subprocess.run(["llvm-objdump", "-d", "--mcpu=gfx950", d + "/a.o"], capture_output=True, text=True).stdout
    return [int(l.split("//")[1].split(":")[0], 16) for l in dis.splitlines() if "//" in l]

def add_touches(body, extra, par, entry_off=0x300):
    isins = lambda l: l.split(";")[0].strip() and not l.strip().endswith(":") and not l.startswith(".")
    n = 0
    while True:
        ad = disasm(body + [f"L_touch{z}:" for z in range(n, 5)])
        idx = [i for i, l in enumerate(body) if isins(l)]
        assert len(idx) == len(ad)
        page = 4096 * (n + 1) - entry_off
        if ad[-1] < page: break
        cand = [(i, a) for i, a in zip(idx, ad) if page <= a <= page + 56]
        best = None
        for i, a in cand:
            if body[i].startswith("v_mfma"):
                j, cnt = i - 1, 0
                while not body[j].startswith("v_mfma"):
                    cnt += 2 if (body[j].startswith("buffer") or body[j] == "s_barrier" or body[j].split()[0] in TRANS or body[j] == "s_nop 1") else 1
                    j -= 1
                if best is None or cnt < best[0]: best = (cnt, i)
        i = best[1]
        body = body[:i] + [f"L_touch{n}:", f"s_cbranch_execz {'L_touched' if par else f'L_touch{n+1}'}"] + body[i:]
        n += 1
    for lab in extra:
        i = body.index(lab + ":")
        assert body[i - 1].split()[0] in ("s_branch", "s_endpgm")
        body = body[:i] + [f"L_touch{n}:", f"s_branch {'L_touched' if par else f'L_touch{n+1}'}"] + body[i:]
        n += 1
    return [l.replace(f"L_touch{n}", "L_touched") for l in body]

def build(o):
    body, nv, lds = gen_main(KNAME, o)
    if o.itouch: body = add_touches(body, ["L_again", "L_rec1"][:o.itouch - 1], o.partouch)
    txt = HDR + f"; @launch grid=(256,1,1) block=(256,1,1) lds={lds}\n"
    txt += '.amdgcn_target "amdgcn-amd-amdhsa--gfx950"\n.text\n' + "\n".join(body) + "\n"
    if o.codepf:
        txt += ".fill 64, 4, 0xbf810000\n"
    txt += f""".section .rodata,"a"
.p2align 6
.amdhsa_kernel {KNAME}
  .amdhsa_next_free_vgpr {nv}
  .amdhsa_next_free_sgpr 102
  .amdhsa_accum_offset 256
  .amdhsa_group_segment_fixed_size 0
  .amdhsa_kernarg_size 40
  .amdhsa_user_sgpr_count 2
  .amdhsa_user_sgpr_kernarg_segment_ptr 1
  .amdhsa_system_sgpr_workgroup_id_x 1
.end_amdhsa_kernel
"""
    return txt

def opts(argv=None):
    p = argparse.ArgumentParser()
    il = lambda s: [int(x) for x in s.split(",")]
    p.add_argument("-o", default="/dev/stdout")
    p.add_argument("--NR", type=int, default=30)
    p.add_argument("--nd", type=int, default=30)
    p.add_argument("--keep", type=int, default=2)
    p.add_argument("--nacc", type=int, default=64)
    p.add_argument("--groups", type=lambda s: [il(x) for x in s.split("/")], default="1,1,1,2,2,3,5/5,5,5/7,8/15")
    p.add_argument("--pub", type=il, default="1,1,1,2,2,3,5,5,5,5,5,5,5,5,5,5")
    p.add_argument("--margin", type=int, default=7)
    p.add_argument("--lat", type=int, default=5)
    p.add_argument("--NP", type=int, default=11)
    p.add_argument("--pace", type=float, default=4.5)
    p.add_argument("--x1at", type=int, default=18)
    p.add_argument("--x1step", type=int, default=2)
    p.add_argument("--pfs", default="-994:w0,-1:w123")
    p.add_argument("--d0", type=float, default=2)
    p.add_argument("--pace0", type=float, default=4.5)
    p.add_argument("--n0", type=int, default=0)
    p.add_argument("--pause", type=float, default=0)
    p.add_argument("--kb", type=il, default="0,0,0")
    p.add_argument("--depth", type=int, default=3)
    p.add_argument("--nap", type=int, default=2)
    p.add_argument("--keupd", type=int, default=10**6)
    p.add_argument("--eflags", default="")
    p.add_argument("--pfpair", type=int, default=0)
    p.add_argument("--bx", type=int, default=0)
    p.add_argument("--pfonly", type=int, default=0)
    p.add_argument("--nohs", type=int, default=0)
    p.add_argument("--pstat", type=il, default="99")
    p.add_argument("--m3", type=int, default=0)
    p.add_argument("--xblk", type=int, default=-1)
    p.add_argument("--cshare", type=int, default=0)
    p.add_argument("--partouch", type=int, default=0)
    p.add_argument("--lateat", type=int, default=0)
    p.add_argument("--finord", type=int, default=0)
    p.add_argument("--eearly", type=int, default=0)
    p.add_argument("--tstat", type=int, default=0)
    p.add_argument("--zig", type=int, default=0)
    p.add_argument("--kprobe", type=int, default=0)
    p.add_argument("--premid", type=int, default=0)
    p.add_argument("--latemix", type=int, default=0)
    p.add_argument("--sflags", default="sc1")
    p.add_argument("--olds", type=int, default=0)
    p.add_argument("--ex4", type=int, default=0)
    p.add_argument("--t1", type=int, default=0)
    p.add_argument("--pz", type=int, default=5)
    p.add_argument("--kpoison", type=int, default=0)
    p.add_argument("--kflag", type=int, default=330)
    p.add_argument("--kpoll", type=int, default=362)
    p.add_argument("--kcheck", type=int, default=395)
    p.add_argument("--kr", type=il, default="392,418,448,432,458")
    p.add_argument("--kpoll2", type=int, default=420)
    p.add_argument("--touch", type=int, default=0)
    p.add_argument("--itouch", type=int, default=0)
    p.add_argument("--itat", type=int, default=9)
    p.add_argument("--rcap", type=int, default=480)
    p.add_argument("--NPa", type=int, default=7)
    p.add_argument("--midn", type=int, default=5)
    p.add_argument("--latepro", type=int, default=1)
    p.add_argument("--spin", type=int, default=200000)
    p.add_argument("--xflags", default="")
    p.add_argument("--wflags", default="")
    p.add_argument("--pfflags", default="")
    p.add_argument("--oflags", default="")
    p.add_argument("--stamps", type=int, default=0)
    p.add_argument("--rt", type=int, default=0)
    p.add_argument("--stat", type=il, default="119,239,359,419,479")
    p.add_argument("--align", type=int, default=1)
    p.add_argument("--verbose", type=int, default=0)
    p.add_argument("--abl", default="")
    p.add_argument("--map", type=int, default=2)
    p.add_argument("--codepf", type=int, default=-1)
    p.add_argument("--diag", default="")
    return p.parse_args(argv)

def code_lines(txt):
    import subprocess, tempfile, os
    d = tempfile.mkdtemp()
    open(d + "/a.s", "w").write(txt)
    subprocess.run(["clang", "-x", "assembler", "-target", "amdgcn-amd-amdhsa", "-mcpu=gfx950", "-c", d + "/a.s", "-o", d + "/a.o"], check=True)
    dis = subprocess.run(["llvm-objdump", "-d", "--mcpu=gfx950", d + "/a.o"], capture_output=True, text=True).stdout
    addr = lambda l: int(l.split("//")[1].split(":")[0], 16)
    ls = [l for l in dis.splitlines() if "//" in l]
    pc = next(addr(l) for l in ls if "s_getpc" in l) + 4
    end = max(addr(l) for l in ls if "s_branch L_back" in l) + 4
    return (end - pc) // 128 + 2

if __name__ == "__main__":
    o = opts()
    if o.codepf < 0:
        o.codepf = 100
        v, o.verbose = o.verbose, 0
        o.codepf = code_lines(build(o))
        o.verbose = v
    open(o.o, "w").write(build(o))
```
